```python
import torch

def _softmax(x, axis=-1):
    return torch.softmax(x, dim=axis)
def _gelu(x):
    return torch.nn.functional.gelu(x, approximate="tanh")
def _silu(x):
    return torch.nn.functional.silu(x)
def _sigmoid(x):
    return torch.sigmoid(x)
def _layernorm(x, axis=-1, eps=1e-5):
    m = x.mean(dim=axis, keepdim=True)
    v = x.var(dim=axis, keepdim=True, unbiased=False)
    return (x - m) / torch.sqrt(v + eps)
def _scatter_add(tgt, idx, src, axis=0):
    return tgt.clone().index_add_(axis, idx, src)
def _segment_sum(src, seg, n):
    out = torch.zeros((n,) + src.shape[1:], dtype=src.dtype)
    return out.index_add_(0, seg, src)
def _pad(x, pw):
    flat = tuple(v for pair in reversed(pw) for v in pair)
    return torch.nn.functional.pad(x, flat)

kernel_name = 'interleave_layers__ssm_conv_h3__dense_activation_silu__prompt'

def setup_inputs():

    _w = (lambda a: (lambda t: t.to(torch.bfloat16) if t.is_floating_point() else t)(torch.as_tensor(a)))
    def _A_setup():
        B, S, D = 1, 2048, 512
        ks = 4
        return {
            "q": _w((lambda *s: torch.randn(*s, dtype=torch.bfloat16) * 0.05)(B, S, D)),
            "k": _w((lambda *s: torch.randn(*s, dtype=torch.bfloat16) * 0.2)(B, S, D)),
            "v": _w((lambda *s: torch.randn(*s, dtype=torch.bfloat16) * 0.2)(B, S, D)),
            "shift_k": _w((lambda *s: torch.randn(*s, dtype=torch.bfloat16) * 0.2)(D, ks) * 0.5),
            "ssm_k": _w((lambda *s: torch.randn(*s, dtype=torch.bfloat16) * 0.4)(D, S) * (1.0 / S ** 0.5)),
            "ssm_D": _w((lambda *s: torch.randn(*s, dtype=torch.bfloat16) * 0.2)(D)),
        }
    _A_in = _A_setup()

    def _B_setup():
        B, S, D, F = 1, 2048, 512, 1792
        return {
            "x": _w((lambda *s: torch.randn(*s, dtype=torch.bfloat16) * 0.05)(B, S, D)),
            "w1": _w((lambda *s: torch.randn(*s, dtype=torch.bfloat16) * 0.8)(D, F) * (D ** -0.5)),
            "w2": _w((lambda *s: torch.randn(*s, dtype=torch.bfloat16) * 0.1)(F, D) * (F ** -0.5)),
        }
    _B_in = _B_setup()

    return {
        "A_q": _A_in["q"],
        "A_k": _A_in["k"],
        "A_v": _A_in["v"],
        "A_shift_k": _A_in["shift_k"],
        "A_ssm_k": _A_in["ssm_k"],
        "A_ssm_D": _A_in["ssm_D"],
        "B_x": _B_in["x"],
        "B_w1": _B_in["w1"],
        "B_w2": _B_in["w2"],
    }

def reference(A_q, A_k, A_v, A_shift_k, A_ssm_k, A_ssm_D, B_x, B_w1, B_w2):
    def _A_ref(q, k, v, shift_k, ssm_k, ssm_D):
        B, S, D = q.shape
        ks = shift_k.shape[-1]
        k_pad = _pad(k, ((0, 0), (ks - 1, 0), (0, 0)))
        k_shift = torch.zeros_like(k)
        for t in range(ks):
            k_shift = k_shift + k_pad[:, t:t + S, :] * shift_k[:, ks - 1 - t][None, None, :]
        kv = k_shift * v
        L = 2 * S
        kv_pad = _pad(kv, ((0, 0), (0, S), (0, 0)))
        kf_pad = _pad(ssm_k, ((0, 0), (0, S)))
        kv_f = (lambda x, axes=(-2,-1): torch.fft.rfft2(x.float(), dim=axes))(kv_pad[:, None, :, :], axes=(1, 2))
        kf_f = (lambda x, axes=(-2,-1): torch.fft.rfft2(x.float(), dim=axes))(kf_pad[:, None, :], axes=(1, 2))
        kf_f = (lambda x, *d: x.permute(*d))(kf_f, 1, 2, 0)
        y_f = kv_f * kf_f[None, :, :, :]
        y = (lambda x, s, axes=(-2,-1): torch.fft.irfft2(x, s=s, dim=axes).to(torch.bfloat16))(y_f, (1, L), axes=(1, 2))[:, 0, :S, :]
        y = y + kv * ssm_D[None, None, :]
        return q * y

    def _B_ref(x, w1, w2):
        h = torch.einsum("bsd,df->bsf", x, w1)
        h = _silu(h)
        out = torch.einsum("bsf,fd->bsd", h, w2)
        return out

    x = A_q
    x = x + _A_ref(_layernorm(x, axis=-1), A_k, A_v, A_shift_k, A_ssm_k, A_ssm_D)
    x = x + _B_ref(_layernorm(x, axis=-1), B_w1, B_w2)
    x = x + _A_ref(_layernorm(x, axis=-1), A_k, A_v, A_shift_k, A_ssm_k, A_ssm_D)
    x = x + _B_ref(_layernorm(x, axis=-1), B_w1, B_w2)
    return x
```

```python
import re

class Asm:
    def __init__(self):
        self.L = []
        self.vm = []
        self.lg = []
        self.n = 0
    def __call__(self, s):
        for line in s.strip("\n").split("\n"):
            line = line.strip()
            if line: self.L.append(line)
    def label(self, name): self.L.append(name + ":")
    def vmem(self, s):
        self(s); self.n += 1; self.vm.append(self.n); return self.n
    def lds(self, s):
        self(s); self.n += 1; self.lg.append(self.n); return self.n
    def need_vm(self, tok):
        if tok not in self.vm: return None
        i = self.vm.index(tok)
        return len(self.vm) - 1 - i
    def need_lg(self, tok):
        if tok not in self.lg: return None
        i = self.lg.index(tok)
        return len(self.lg) - 1 - i
    def wait(self, vm=None, lg=None):
        parts = []
        def mn(toks, f):
            if not isinstance(toks, (list, tuple)): toks = [toks]
            ns = [f(t) for t in toks]
            ns = [x for x in ns if x is not None]
            return min(ns) if ns else None
        if vm is not None:
            n = 0 if vm == 'all' else mn(vm, self.need_vm)
            if n is not None:
                n = min(n, 63)
                parts.append(f"vmcnt({n})"); self.vm = self.vm[len(self.vm)-n:] if n else []
        if lg is not None:
            n = 0 if lg == 'all' else mn(lg, self.need_lg)
            if n is not None:
                n = min(n, 15)
                parts.append(f"lgkmcnt({n})"); self.lg = self.lg[len(self.lg)-n:] if n else []
        if parts:
            self("s_waitcnt " + " ".join(parts)); return True
        return False
    def text(self):
        out = []
        for l in self.L:
            out.append(l if (l.endswith(":") or l.startswith(".") or l.startswith(";")) else "    " + l)
        return "\n".join(out) + "\n"

def vr(b, n=1, p='v'):
    return f"{p}{b}" if n == 1 else f"{p}[{b}:{b+n-1}]"
def ar(b, n=1): return vr(b, n, 'a')
def sr(b, n=1): return vr(b, n, 's')

_reg = re.compile(r'(?<![\w.])([vas])(?:(\d+)|\[(\d+):(\d+)\])(?![\w])')
def regs_of(opnd):
    out = set()
    for m in _reg.finditer(opnd):
        p = m.group(1)
        if m.group(2) is not None: out.add((p, int(m.group(2))))
        else:
            for i in range(int(m.group(3)), int(m.group(4))+1): out.add((p, i))
    if re.search(r'\bvcc\b', opnd): out.add(('s', 'vcc'))
    if re.search(r'\bexec\b', opnd): out.add(('s', 'exec'))
    if re.search(r'\bm0\b', opnd): out.add(('s', 'm0'))
    return out

TRANS = ("v_exp_f32", "v_log_f32", "v_rcp_f32", "v_rsq_f32", "v_sqrt_f32", "v_sin_f32", "v_cos_f32")
class I:
    def __init__(self, line):
        self.line = line
        code = line.split(";")[0].strip()
        sp = code.split(None, 1)
        self.op = sp[0]
        rest = sp[1] if len(sp) > 1 else ""
        ops = [o.strip() for o in re.split(r',(?![^\[]*\])', rest)] if rest else []
        op = self.op
        self.mfma = op.startswith("v_mfma")
        self.valu = op.startswith("v_") and not self.mfma
        self.vmem = op.startswith(("buffer_", "global_", "flat_"))
        self.ds = op.startswith("ds_")
        self.salu = op.startswith("s_")
        self.trans = op.replace("_e32", "").replace("_e64", "") in TRANS
        self.dot = op.startswith("v_dot")
        self.dpp = "_dpp" in op or "row_" in rest or "quad_perm" in rest
        self.perml = op.startswith("v_permlane")
        self.rdlane = op.startswith(("v_readlane", "v_readfirstlane"))
        self.ldsdma = self.vmem and re.search(r'\blds\b', rest) is not None
        self.w = set(); self.r = set(); self.srcC = set(); self.data = set()
        self.nop = 0
        if op == "s_nop": self.nop = int(rest, 0) + 1
        if self.mfma:
            self.w = regs_of(ops[0]); self.rAB = regs_of(ops[1]) | regs_of(ops[2]); self.srcC = regs_of(ops[3]); self.r = self.rAB | self.srcC
            self.passes = 8 if "32x32x16" in op else 4
        elif self.valu:
            self.w = regs_of(ops[0]); src = ops[1:]
            if "_co_" in op or op.startswith(("v_div_scale", "v_mad_u64")):
                self.w |= regs_of(ops[1]); src = ops[2:]
            for o in src: self.r |= regs_of(o)
            if op.startswith(("v_fmac", "v_dot2c", "v_pk_fmac")) or self.dpp: self.r |= regs_of(ops[0])
            if self.perml and "swap" in op:
                self.w |= regs_of(ops[1]); self.r |= regs_of(ops[0])
            if op.startswith("v_cmpx"): self.w.add(('s', 'exec'))
        elif self.vmem:
            if op.startswith(("buffer_wbl2", "buffer_inv")): pass
            elif "store" in op or "atomic" in op:
                for o in ops: self.r |= regs_of(o)
                d = ops[0] if op.startswith("buffer_") else ops[1]
                if "x4" in op or "x3" in op: self.data = regs_of(d)
            elif self.ldsdma:
                for o in ops: self.r |= regs_of(o)
                self.r.add(('s', 'm0'))
            else:
                self.w = regs_of(ops[0])
                for o in ops[1:]: self.r |= regs_of(o)
        elif self.ds:
            if "read" in op or "permute" in op or "swizzle" in op:
                self.w = regs_of(ops[0])
                for o in ops[1:]: self.r |= regs_of(o)
            else:
                for o in ops: self.r |= regs_of(o)
        elif self.salu:
            if op.startswith(("s_cmp", "s_cbranch", "s_branch", "s_waitcnt", "s_barrier", "s_nop", "s_endpgm", "s_sleep", "s_setprio", "s_setpc")):
                for o in ops: self.r |= regs_of(o)
            elif ops:
                self.w = regs_of(ops[0])
                for o in ops[1:]: self.r |= regs_of(o)
                if "saveexec" in op: self.w.add(('s', 'exec'))

def required(p, c):
    n = 0
    vw = {x for x in p.w if x[0] in 'va'}
    sw = {x for x in p.w if x[0] == 's'}
    if p.mfma:
        big = p.passes == 8
        if c.mfma:
            if vw & c.rAB: n = max(n, 12 if big else 8)
            if vw & c.srcC:
                if not (vw == c.srcC and c.passes == p.passes): n = max(n, 10 if big else 6)
            elif vw & c.w:
                n = max(n, 10 if big else 6)
        elif (c.valu or c.vmem or c.ds) and vw & (c.r | c.w): n = max(n, 12 if big else 8)
        if c.valu and p.srcC & c.w: n = max(n, 7 if big else 3)
    if p.valu:
        if c.mfma and vw & c.r: n = max(n, 2)
        if c.valu and c.dpp and vw & c.r: n = max(n, 2)
        if c.perml and vw & c.r: n = max(n, 2)
        if c.rdlane and vw & c.r: n = max(n, 1)
        if p.trans and c.valu and not c.trans and vw & c.r: n = max(n, 1)
        if p.trans and (c.ds or c.vmem) and vw & c.r: n = max(n, 1)
        if p.dot and vw & (c.r | c.w):
            if c.op == p.op and not (vw & (c.r - c.w)): pass
            else: n = max(n, 3)
        if sw:
            if c.vmem and sw & c.r: n = max(n, 5)
            if c.valu and sw & c.r: n = max(n, 4 if c.rdlane else 2)
            if c.salu and sw & c.r: n = max(n, 1)
            if ('s', 'exec') in sw:
                if c.dpp: n = max(n, 5)
                if c.mfma or c.rdlane or c.perml: n = max(n, 4)
    if p.salu and ('s', 'm0') in sw and c.ldsdma: n = max(n, 1)
    if p.vmem and p.data and p.data & c.w: n = max(n, 2)
    return n

def fix_hazards(lines, verbose=False):
    out = []; hist = []
    added = 0
    for line in lines:
        if line.endswith(":") or line.startswith(".") or line.startswith(";"):
            out.append(line); continue
        c = I(line)
        need = 0; dist = 0; who = None
        for p in reversed(hist):
            rq = required(p, c)
            if rq - dist > need: need = rq - dist; who = p
            dist += p.nop if p.nop else 1
            if dist >= 12: break
        if need > 0:
            if verbose: print(f"nop {need}: {who.line}  ->  {line}")
            out.append(f"s_nop {need-1}"); hist.append(I(f"s_nop {need-1}")); added += need
        out.append(line); hist.append(c)
        if len(hist) > 16: hist = hist[-16:]
    return out, added
```

```python
from asmlib import *
KVT  = 0x0000000
W1R  = 0x0200000
W2R  = 0x0400000
YB   = 0x0600000
XN   = 0x0800000
FL   = 0x0A00000
PART = 0x1000000
WS_SIZE = 0x2000000

def srd(a, d, b, size):
    a(f"s_mov_b32 s{d}, s{b}\ns_mov_b32 s{d+1}, s{b+1}\ns_mov_b32 s{d+2}, {size:#x}\ns_mov_b32 s{d+3}, 0x20000")

def kd(name, vgpr, accum, sgpr=102):
    return f""".section .rodata,"a"
.p2align 6
.amdhsa_kernel {name}
  .amdhsa_next_free_vgpr {vgpr}
  .amdhsa_next_free_sgpr {sgpr}
  .amdhsa_accum_offset {accum}
  .amdhsa_group_segment_fixed_size 0
  .amdhsa_kernarg_size 96
  .amdhsa_user_sgpr_count 2
  .amdhsa_user_sgpr_kernarg_segment_ptr 1
  .amdhsa_system_sgpr_workgroup_id_x 1
  .amdhsa_float_denorm_mode_32 3
.end_amdhsa_kernel
.text
"""
def head(name):
    return f".text\n.globl {name}\n.p2align 8\n.type {name},@function\n{name}:\n"

def gen_k0(NT=""):
    a = Asm()
    a("""
s_cmp_ge_u32 s2, 256
s_cbranch_scc1 L0_end
s_load_dwordx4 s[4:7], s[0:1], 8
s_load_dwordx2 s[8:9], s[0:1], 24
s_load_dwordx4 s[12:15], s[0:1], 56
s_load_dwordx2 s[10:11], s[0:1], 88
v_lshrrev_b32 v2, 6, v0
v_and_b32 v1, 63, v0
v_readfirstlane_b32 s3, v2
s_and_b32 s36, s2, 7
s_lshr_b32 s37, s2, 3
""")
    a("""
v_lshrrev_b32 v3, 3, v1
s_lshl_b32 s38, s37, 3
s_add_u32 s38, s38, s3
s_lshl_b32 s38, s38, 13
s_lshl_b32 s39, s36, 7
s_add_u32 s38, s38, s39
v_lshl_add_u32 v3, v3, 10, s38
v_bfe_u32 v4, v1, 4, 1
v_lshlrev_b32 v4, 1, v4
s_add_u32 s39, s3, 1
s_and_b32 s39, s39, 1
s_lshl_b32 s39, s39, 2
v_and_b32 v5, 7, v1
v_xor_b32 v4, v4, v5
v_xor_b32 v4, s39, v4
v_lshl_add_u32 v3, v4, 4, v3
v_subrev_u32 v6, 0x4000, v3
s_mov_b32 s40, 0x8000
s_lshl_b32 s41, s3, 10
s_waitcnt lgkmcnt(0)
""")
    srd(a, 16, 4, 0x200000); srd(a, 20, 6, 0x200000)
    a("s_add_u32 m0, s41, 1024")
    a.vmem(f"buffer_load_dwordx4 v3, s[16:19], 0 offen {NT} lds")
    a("s_add_u32 m0, s41, 9216")
    a.vmem(f"buffer_load_dwordx4 v3, s[20:23], 0 offen {NT} lds")
    a("s_add_u32 m0, s41, 5120")
    a.vmem(f"buffer_load_dwordx4 v3, s[16:19], s40 offen {NT} lds")
    a("s_add_u32 m0, s41, 13312")
    a.vmem(f"buffer_load_dwordx4 v3, s[20:23], s40 offen {NT} lds")
    a("""
s_cmp_lg_u32 s3, 1
s_cbranch_scc1 L0_nohalo
s_mov_b32 m0, 0
s_nop 0
buffer_load_dwordx4 v6, s[16:19], 0 offen lds
L0_nohalo:
""")
    srd(a, 24, 8, 4096); srd(a, 32, 10, WS_SIZE)
    a("""
v_and_b32 v7, 15, v1
s_lshl_b32 s38, s36, 6
s_lshl_b32 s39, s3, 4
s_add_u32 s38, s38, s39
v_add_u32 v8, s38, v7
v_lshlrev_b32 v9, 3, v8
""")
    tsh = a.vmem("buffer_load_dwordx2 v[10:11], v9, s[24:27], 0 offen")
    a("""
s_lshl_b32 s42, s2, 2
s_add_u32 s42, s42, s3
s_movk_i32 s44, 3584
s_cmp_ge_u32 s42, 448
s_cselect_b32 s43, 1, 0
s_cselect_b32 s28, s14, s12
s_cselect_b32 s29, s15, s13
s_cselect_b32 s44, 1024, s44
s_mov_b32 s31, 0x20000
s_cmp_ge_u32 s42, 896
s_cselect_b32 s30, 0, 0x1c0000
s_and_b32 s45, s42, 15
s_lshr_b32 s46, s42, 4
s_sub_u32 s47, s42, 448
s_lshr_b32 s48, s47, 3
s_and_b32 s49, s47, 7
s_cmp_eq_u32 s43, 1
s_cselect_b32 s50, s48, s45
s_cselect_b32 s51, s49, s46
s_lshl_b32 s50, s50, 5
s_mul_i32 s50, s50, s44
s_lshl_b32 s51, s51, 7
s_add_u32 s50, s50, s51
s_lshl_b32 s51, s44, 3
v_lshrrev_b32 v12, 3, v1
v_mul_lo_u32 v12, v12, s44
v_lshl_add_u32 v12, v5, 4, v12
s_lshl_b32 s52, s3, 12
s_add_u32 s52, s52, 17408
""")
    for i in range(4):
        a(f"s_add_u32 m0, s52, {i*1024}")
        tw = a.vmem(f"buffer_load_dwordx4 v12, s[28:31], s50 offen {NT} lds")
        if i < 3: a("s_add_u32 s50, s50, s51")
    a("""
v_lshrrev_b32 v13, 4, v1
v_bfe_u32 v14, v1, 2, 2
v_lshl_add_u32 v15, v13, 3, v14
v_add_u32 v15, 8, v15
v_lshlrev_b32 v15, 7, v15
v_bfe_u32 v16, v1, 1, 1
s_lshl_b32 s38, s3, 1
v_add_u32 v16, s38, v16
v_bfe_u32 v17, v1, 3, 1
v_lshlrev_b32 v17, 1, v17
v_xor_b32 v16, v16, v17
v_add_u32 v17, 1, v13
v_and_b32 v17, 1, v17
v_lshlrev_b32 v17, 2, v17
v_xor_b32 v16, v16, v17
v_lshl_add_u32 v15, v16, 4, v15
v_and_b32 v17, 1, v1
v_lshl_add_u32 v15, v17, 3, v15
v_xor_b32 v16, 64, v15
v_subrev_u32 v16, 512, v16
""")
    a(f"""
v_lshrrev_b32 v18, 1, v8
v_lshlrev_b32 v18, 13, v18
v_lshl_add_u32 v18, v17, 6, v18
v_sub_u32 v19, 3, v13
v_lshl_add_u32 v18, v19, 4, v18
s_lshl_b32 s38, s37, 8
s_sub_u32 s53, {KVT + 62*128}, s38
s_mov_b32 s54, 0xffff
s_mov_b32 s55, 0xffff0000
""")
    a.wait(vm=tsh)
    a("""
v_alignbit_b32 v20, v10, v10, 16
v_alignbit_b32 v21, v11, v11, 16
v_and_b32 v22, s54, v10
v_bfi_b32 v23, s54, v11, v10
v_and_b32 v24, s55, v11
s_barrier
""")
    toks = []
    for u in range(2):
        K = 32 + 16*u; V = K + 6
        toks.append([a.lds(f"ds_read_b64_tr_b16 v[{K}:{K+1}], v16 offset:{u*4096}"),
                     a.lds(f"ds_read_b64_tr_b16 v[{K+2}:{K+3}], v15 offset:{u*4096}"),
                     a.lds(f"ds_read_b64_tr_b16 v[{K+4}:{K+5}], v15 offset:{u*4096+512}"),
                     a.lds(f"ds_read_b64_tr_b16 v[{V}:{V+1}], v15 offset:{u*4096+8192}"),
                     a.lds(f"ds_read_b64_tr_b16 v[{V+2}:{V+3}], v15 offset:{u*4096+8192+512}")])
    for u in range(2):
        K = 32 + 16*u; V = K + 6; E = 64; P = 72; O = 80 + 4*u
        a.wait(lg=toks[u][2])
        for i in range(4):
            a(f"v_dot2_f32_bf16 v{E+2*i}, v{K+i+2}, v22, 0")
            a(f"v_dot2_f32_bf16 v{E+2*i+1}, v{K+i+2}, v20, 0")
        for i in range(4):
            a(f"v_dot2_f32_bf16 v{E+2*i}, v{K+i+1}, v23, v{E+2*i}")
            a(f"v_dot2_f32_bf16 v{E+2*i+1}, v{K+i+1}, v21, v{E+2*i+1}")
        for i in range(4):
            a(f"v_dot2_f32_bf16 v{E+2*i}, v{K+i}, v24, v{E+2*i}")
        a.wait(lg=toks[u][4])
        for i in range(4):
            a(f"v_lshlrev_b32 v{P+2*i}, 16, v{V+i}")
            a(f"v_and_b32 v{P+2*i+1}, s55, v{V+i}")
        for i in range(4):
            a(f"v_pk_mul_f32 v[{E+2*i}:{E+2*i+1}], v[{E+2*i}:{E+2*i+1}], v[{P+2*i}:{P+2*i+1}]")
        for i in range(4):
            a(f"v_cvt_pk_bf16_f32 v{O+3-i}, v{E+2*i+1}, v{E+2*i}")
        a.vmem(f"buffer_store_dwordx4 v[{O}:{O+3}], v18, s[32:35], s53 offen offset:{128*(1-u)}")
    a(f"""
s_cmp_ge_u32 s42, 896
s_cbranch_scc1 L0_now
v_lshlrev_b32 v25, 4, v1
s_waitcnt vmcnt(2)
s_cmp_eq_u32 s43, 1
s_cbranch_scc1 L0_w2
v_lshl_add_u32 v26, v13, 3, v14
v_lshlrev_b32 v26, 7, v26
v_and_b32 v27, 3, v1
v_lshl_add_u32 v26, v27, 3, v26
v_add_u32 v26, s52, v26
s_lshl_b32 s46, s46, 16
s_lshl_b32 s45, s45, 10
s_add_u32 s46, s46, s45
s_add_u32 s46, s46, {W1R}
""")
    for b in range(4):
        for hh in range(2):
            a(f"ds_read_b64_tr_b16 v[{32+4*b+2*hh}:{33+4*b+2*hh}], v26 offset:{32*b+512*hh}")
    for b in range(4):
        a(f"s_waitcnt lgkmcnt({6-2*b})")
        a(f"buffer_store_dwordx4 v[{32+4*b}:{35+4*b}], v25, s[32:35], s46 offen")
        if b < 3: a("s_add_u32 s46, s46, 16384")
    a(f"""
s_branch L0_end
L0_w2:
v_lshrrev_b32 v26, 5, v1
v_lshl_add_u32 v26, v26, 3, v14
v_lshlrev_b32 v26, 7, v26
v_and_b32 v27, 1, v13
v_lshl_add_u32 v26, v27, 5, v26
v_lshl_add_u32 v26, v17, 4, v26
v_bfe_u32 v27, v1, 1, 1
v_lshl_add_u32 v26, v27, 3, v26
v_add_u32 v26, s52, v26
s_mul_i32 s45, s48, 37
s_lshr_b32 s45, s45, 8
s_mul_i32 s46, s45, 7
s_sub_u32 s46, s48, s46
s_lshl_b32 s45, s45, 4
s_lshl_b32 s49, s49, 1
s_add_u32 s45, s45, s49
s_mul_i32 s45, s45, 14
s_lshl_b32 s46, s46, 1
s_add_u32 s45, s45, s46
s_lshl_b32 s45, s45, 10
s_add_u32 s45, s45, {W2R}
s_add_u32 s46, s45, 14336
""")
    for b in range(4):
        kk, Cb = b >> 1, b & 1
        for hh in range(2):
            a(f"ds_read_b64_tr_b16 v[{32+4*b+2*hh}:{33+4*b+2*hh}], v26 offset:{2048*kk+64*Cb+512*hh}")
    for b in range(4):
        kk, Cb = b >> 1, b & 1
        a(f"s_waitcnt lgkmcnt({6-2*b})")
        a(f"buffer_store_dwordx4 v[{32+4*b}:{35+4*b}], v25, s[32:35], s{45+Cb} offen offset:{1024*kk}")
    a(f"""
s_branch L0_end
L0_now:
s_cmp_lg_u32 s2, 255
s_cbranch_scc1 L0_end
v_mov_b32 v32, 0
v_mov_b32 v33, 0
v_mov_b32 v34, 0
v_mov_b32 v35, 0
v_lshlrev_b32 v25, 4, v0
s_mov_b32 s45, {FL}
s_mov_b32 s46, {FL+4096}
buffer_store_dwordx4 v[32:35], v25, s[32:35], s45 offen
buffer_store_dwordx4 v[32:35], v25, s[32:35], s46 offen
L0_end:
s_endpgm
""")
    return a

HC_STR = 4160
UR = 8*HC_STR
UR_STR = 4608
RED = UR + 2*UR_STR
K1_LDS = RED + 32768
def gen_k1(YG=False, NT=""):
    a = Asm()
    a("""
s_cmp_ge_u32 s2, 256
s_cbranch_scc1 L1_end
s_load_dwordx4 s[4:7], s[0:1], 32
s_load_dwordx2 s[10:11], s[0:1], 88
v_lshrrev_b32 v2, 6, v0
v_and_b32 v1, 63, v0
v_readfirstlane_b32 s3, v2
s_and_b32 s36, s2, 7
s_lshr_b32 s37, s2, 3
s_lshl_b32 s38, s36, 5
s_add_u32 s38, s38, s37
s_lshl_b32 s39, s38, 13
s_add_u32 s40, s39, 4096
v_lshlrev_b32 v3, 4, v0
v_subrev_u32 v4, 8, v3
v_cmp_eq_u32 vcc, 0, v0
v_mov_b32 v5, 0x40000000
v_lshrrev_b32 v6, 2, v0
v_cndmask_b32 v4, v4, v5, vcc
v_lshlrev_b32 v6, 7, v6
v_and_b32 v7, 3, v0
v_lshl_add_u32 v6, v7, 4, v6
s_lshl_b32 s41, s3, 10
s_lshl_b32 s44, s38, 2
s_waitcnt lgkmcnt(0)
""")
    srd(a, 16, 4, 0x200000); srd(a, 32, 10, WS_SIZE)
    a("s_load_dword s45, s[6:7], s44")
    th = []
    for c in range(2):
        H = 16 + 8*c
        a.vmem(f"buffer_load_dwordx4 v[{H+2}:{H+5}], v3, s[16:19], s{39+c} offen {NT}")
        th.append(a.vmem(f"buffer_load_dwordx2 v[{H}:{H+1}], v4, s[16:19], s{39+c} offen {NT}"))
    a(f"s_add_u32 s42, s39, {KVT}\ns_add_u32 s43, s42, 64")
    for c in range(2):
        a(f"s_add_u32 m0, s41, {UR + c*UR_STR}")
        tu = a.vmem(f"buffer_load_dwordx4 v6, s[32:35], s{42+c} offen lds")
    a(f"""
v_mov_b32 v8, 0
v_mov_b32 v9, 0
v_mov_b32 v10, 0
v_mov_b32 v11, 0
v_lshrrev_b32 v12, 5, v1
v_mul_u32_u24 v12, {UR_STR}, v12
v_and_b32 v13, 31, v1
v_lshl_add_u32 v12, v13, 4, v12
v_add_u32 v12, {UR+4096}, v12
v_bfe_u32 v13, v1, 1, 3
v_mul_u32_u24 v13, {HC_STR}, v13
v_and_b32 v14, 1, v1
v_lshl_add_u32 v13, v14, 4, v13
v_add_u32 v13, 32, v13
v_cmp_gt_u32 vcc, 64, v0
s_nop 1
v_cndmask_b32 v12, v13, v12, vcc
""")
    a.lds("ds_write_b128 v12, v[8:11]")
    a(f"""
v_and_b32 v8, 15, v1
v_lshrrev_b32 v9, 4, v1
v_sub_u32 v10, 15, v8
v_and_b32 v11, 3, v10
v_mul_u32_u24 v12, {HC_STR}, v11
v_lshrrev_b32 v10, 2, v10
v_lshlrev_b32 v10, 3, v10
v_sub_u32 v12, v12, v10
v_lshl_add_u32 v12, v9, 4, v12
s_lshr_b32 s46, s3, 1
s_and_b32 s47, s3, 1
s_lshl_b32 s47, s47, 8
s_mul_i32 s48, s46, {4*HC_STR}
s_add_u32 s48, s48, s47
s_add_u32 s48, s48, 64
v_add_u32 v12, s48, v12
s_mul_i32 s48, s46, {UR_STR}
s_add_u32 s48, s48, s47
s_add_u32 s48, s48, {UR + 4064 - 3584}
v_lshlrev_b32 v13, 5, v8
v_sub_u32 v13, s48, v13
v_lshl_add_u32 v13, v9, 4, v13
""")
    for c in range(2):
        H = 16 + 8*c
        a.wait(vm=th[c])
        base = c*4*HC_STR + 64
        a.lds(f"ds_write_b128 v3, v[{H+2}:{H+5}] offset:{base}")
        for i in range(4): a(f"v_alignbit_b32 v{32+i}, v{H+2+i}, v{H+1+i}, 16")
        a.lds(f"ds_write_b128 v3, v[32:35] offset:{base+HC_STR}")
        for i in range(4): a(f"v_mov_b32 v{36+i}, v{H+1+i}")
        a.lds(f"ds_write_b128 v3, v[36:39] offset:{base+2*HC_STR}")
        for i in range(4): a(f"v_alignbit_b32 v{40+i}, v{H+1+i}, v{H+i}, 16")
        a.lds(f"ds_write_b128 v3, v[40:43] offset:{base+3*HC_STR}")
        if c == 0: a.wait(lg='all')
    a.wait(vm='all', lg='all')
    a("s_barrier")
    ACC = 16; AF = [48, 112]; BF = [80, 144]
    def reads(e):
        p = e & 1; L = []
        for k in range(8):
            L.append(f"ds_read_b64 v[{AF[p]+4*k}:{AF[p]+4*k+1}], v12 offset:{512*k+64*e}")
            L.append(f"ds_read_b64 v[{AF[p]+4*k+2}:{AF[p]+4*k+3}], v12 offset:{512*k+64*e+8}")
            L.append(f"ds_read_b128 v[{BF[p]+4*k}:{BF[p]+4*k+3}], v13 offset:{512*(7-k)+64*e}")
        return L
    order = []
    for k in range(8):
        st = [(g, k) for g in range(k) if g+k <= 7] + [(k, b) for b in range(k+1) if k+b <= 7]
        order.append(st)
    r0 = reads(0); tk = []
    for s in r0[:15]: tk.append(a.lds(s))
    pend = r0[15:]
    seen = set()
    for e in range(4):
        p = e & 1
        nxt = reads(e+1) if e < 3 else []
        if e > 0: a.wait(lg='all')
        for k in range(8):
            if e == 0: a.wait(lg=tk[3*k+2])
            for (g, b) in order[k]:
                t = g+b
                c = f"v[{ACC+4*t}:{ACC+4*t+3}]"
                a(f"v_mfma_f32_16x16x32_bf16 {c}, v[{AF[p]+4*g}:{AF[p]+4*g+3}], v[{BF[p]+4*b}:{BF[p]+4*b+3}], {c if t in seen else 0}")
                seen.add(t)
                if pend: tk.append(a.lds(pend.pop(0)))
                elif nxt: a.lds(nxt.pop(0))
        assert not nxt and not pend
    a(f"""
v_and_b32 v10, 1, v9
v_lshlrev_b32 v10, 1, v10
v_xor_b32 v10, v10, v8
v_lshlrev_b32 v10, 4, v10
v_lshl_add_u32 v10, v9, 8, v10
s_lshl_b32 s48, s3, 13
s_add_u32 s48, s48, {RED}
v_add_u32 v10, s48, v10
v_and_b32 v4, 1, v1
v_bfe_u32 v5, v1, 1, 4
v_lshrrev_b32 v6, 5, v1
v_lshl_add_u32 v7, v6, 1, v4
v_lshlrev_b32 v11, 1, v4
v_xor_b32 v11, v11, v5
v_lshlrev_b32 v11, 4, v11
v_lshl_add_u32 v11, v7, 8, v11
s_lshl_b32 s48, s3, 11
s_add_u32 s48, s48, {RED}
v_add_u32 v11, s48, v11
""")
    for t in range(8):
        a.lds(f"ds_write_b128 v10, v[{ACC+4*t}:{ACC+4*t+3}] offset:{1024*t}")
    a(f"""
v_lshlrev_b32 v14, 5, v5
v_lshl_add_u32 v14, v7, 3, v14
s_lshl_b32 s48, s3, 10
s_sub_u32 s48, {UR + 4088 - 512}, s48
v_sub_u32 v14, s48, v14
""")
    tu = {}
    for aa in range(2):
        for c in range(2):
            tu[aa, c] = a.lds(f"ds_read_b64 v[{48+4*aa+2*c}:{49+4*aa+2*c}], v14 offset:{c*UR_STR + 512*(1-aa)}")
    a(f"""
s_and_b32 s46, s38, 3
s_lshl_b32 s46, s46, 4
s_lshr_b32 s47, s38, 2
s_and_b32 s47, s47, 15
s_add_u32 s46, s46, s47
s_and_b32 s47, s38, 192
s_add_u32 s46, s46, s47
s_lshl_b32 s46, s46, {7 if YG else 5}
s_lshl_b32 s47, s3, 19
s_add_u32 s46, s46, s47
s_add_u32 s46, s46, {YB}
s_add_u32 s47, s46, {32*8192}
v_lshl_add_u32 v15, v5, 1, v6
""")
    if YG:
        a("v_and_b32 v12, 3, v15\nv_lshrrev_b32 v15, 2, v15\nv_lshlrev_b32 v15, 15, v15\nv_lshl_add_u32 v15, v12, 5, v15")
    else:
        a("v_lshlrev_b32 v15, 13, v15")
    a(f"""
v_lshl_add_u32 v15, v4, 4, v15
s_lshl_b32 s50, s45, 16
s_and_b32 s52, s45, 0xffff0000
s_mov_b32 s51, s50
s_mov_b32 s53, s52
s_mov_b32 s55, 0xffff0000
""")
    a.wait(lg='all')
    a("s_barrier")
    tr = {}
    for aa in range(2):
        for c in range(2):
            for eh in range(2):
                R = 64 + 16*aa + 8*c + 4*eh
                tr[aa, c, eh] = a.lds(f"ds_read_b128 v[{R}:{R+3}], v11 offset:{(2*c+eh)*8192 + aa*1024}")
    for aa in range(2):
        for c in range(2):
            U = 48+4*aa+2*c; F = 100 + 8*aa + 4*c
            a(f"v_and_b32 v{F}, s55, v{U+1}\nv_lshlrev_b32 v{F+1}, 16, v{U+1}\nv_and_b32 v{F+2}, s55, v{U}\nv_lshlrev_b32 v{F+3}, 16, v{U}")
    for aa in range(2):
        a.wait(lg=tr[aa, 1, 1])
        for c in range(2):
            R = 64 + 16*aa + 8*c; F = 100 + 8*aa + 4*c
            for h in range(2):
                a(f"v_pk_add_f32 v[{R+2*h}:{R+2*h+1}], v[{R+2*h}:{R+2*h+1}], v[{R+4+2*h}:{R+5+2*h}]")
            for h in range(2):
                a(f"v_pk_fma_f32 v[{R+2*h}:{R+2*h+1}], v[{F+2*h}:{F+2*h+1}], s[{50+2*c}:{51+2*c}], v[{R+2*h}:{R+2*h+1}]")
        R = 64 + 16*aa; O = 120 + 4*aa
        for r in range(4):
            a(f"v_cvt_pk_bf16_f32 v{O+r}, v{R+r}, v{R+8+r}")
        a.vmem(f"buffer_store_dwordx4 v[{O}:{O+3}], v15, s[32:35], s{46+aa} offen")
    a("L1_end:\ns_endpgm")
    return a
```

```python
import sys
from k01 import *; from k2 import *
NAME = "interleave_layers__ssm_conv_h3__dense_activation_silu__prompt"
def build(YG=False, NT="", extra_launch=0, verbose=False, ST=False):
    ref = open("cdna_kernels/" + NAME + ".s.ref").read().split("\n")
    hdr = [l for l in ref if l.startswith(";") and "@launch" not in l and "Override" not in l and "Harness parses" not in l]
    s = "\n".join(hdr) + "\n"
    s += "; @launch kernel=prep_kernel grid=(256,1,1) block=(256,1,1) lds=33792\n"
    s += f"; @launch kernel=conv_kernel grid=(256,1,1) block=(256,1,1) lds={K1_LDS}\n"
    for i in range(extra_launch): s += "; @launch kernel=nop_kernel grid=(256,1,1) block=(256,1,1) lds=0\n"
    s += f"; @launch kernel=ffn_kernel grid=(256,1,1) block=(256,1,1) lds={K2_LDS}\n"
    s += '.amdgcn_target "amdgcn-amd-amdhsa--gfx950"\n'
    for name, a, vg, ac in (("prep_kernel", gen_k0(NT, ST), 96, 96), ("conv_kernel", gen_k1(YG, NT, ST), 184, 184), ("ffn_kernel", gen_k2(YG, ST), 512, 256)):
        a.L, n = fix_hazards(a.L, verbose)
        print(name, "instrs", len(a.L), "nops added", n, file=sys.stderr)
        s += head(name) + a.text() + kd(name, vg, ac)
    if extra_launch: s += head("nop_kernel") + "    s_endpgm\n" + kd("nop_kernel", 8, 8)
    return s
if __name__ == "__main__":
    out = sys.argv[1] if len(sys.argv) > 1 else "cdna_kernels/" + NAME + ".s"
    kw = eval("dict(" + (sys.argv[2] if len(sys.argv) > 2 else "") + ")")
    open(out, "w").write(build(**kw))
```

```python
from asmlib import *
KVT  = 0x0000000
W1R  = 0x0200000
W2R  = 0x0400000
YB   = 0x0600000
XN   = 0x0800000
FL   = 0x0A00000
PART = 0x1000000
WS_SIZE = 0x2000000

STAMP = 0x0B00000
class Stamps:
    def __init__(self, a, on, kidx, base=84):
        self.a, self.on, self.k, self.base, self.n = a, on, kidx, base, 0
    def real(self):
        if self.on: self.a(f"s_memrealtime s[{self.base}:{self.base+1}]\ns_waitcnt lgkmcnt(0)\nv_writelane_b32 v{self.reg}, s{self.base}, {self.n}"); self.n += 1; self.a.lg = []
    def cyc(self):
        if self.on: self.a(f"s_memtime s[{self.base}:{self.base+1}]\ns_mov_b32 m0, s{self.base+2}\ns_waitcnt lgkmcnt(0)\nv_writelane_b32 v{self.reg}, s{self.base}, m0\ns_add_u32 s{self.base+2}, s{self.base+2}, 1"); self.a.lg = []
    def init(self, reg):
        self.reg = reg
        if self.on: self.a(f"s_mov_b32 s{self.base+2}, 2\nv_mov_b32 v{reg}, 0"); self.real(); self.cyc()
    def flush(self, tmp, wave):
        if not self.on: return
        self.cyc(); self.real()
        self.a(f"""v_mbcnt_lo_u32_b32 v{tmp}, -1, 0
v_mbcnt_hi_u32_b32 v{tmp}, -1, v{tmp}
v_lshlrev_b32 v{tmp}, 2, v{tmp}
s_lshl_b32 s{self.base}, s2, 2
s_add_u32 s{self.base}, s{self.base}, s{wave}
s_lshl_b32 s{self.base}, s{self.base}, 8
s_add_u32 s{self.base}, s{self.base}, {STAMP + self.k*0x40000}
buffer_store_dword v{self.reg}, v{tmp}, s[32:35], s{self.base} offen""")

def srd(a, d, b, size):
    a(f"s_mov_b32 s{d}, s{b}\ns_mov_b32 s{d+1}, s{b+1}\ns_mov_b32 s{d+2}, {size:#x}\ns_mov_b32 s{d+3}, 0x20000")

def kd(name, vgpr, accum, sgpr=102):
    return f""".section .rodata,"a"
.p2align 6
.amdhsa_kernel {name}
  .amdhsa_next_free_vgpr {vgpr}
  .amdhsa_next_free_sgpr {sgpr}
  .amdhsa_accum_offset {accum}
  .amdhsa_group_segment_fixed_size 0
  .amdhsa_kernarg_size 96
  .amdhsa_user_sgpr_count 2
  .amdhsa_user_sgpr_kernarg_segment_ptr 1
  .amdhsa_system_sgpr_workgroup_id_x 1
  .amdhsa_float_denorm_mode_32 3
.end_amdhsa_kernel
.text
"""
def head(name):
    return f".text\n.globl {name}\n.p2align 8\n.type {name},@function\n{name}:\n"

def gen_k0(NT="", ST=False):
    a = Asm(); st = Stamps(a, ST, 0)
    a("s_cmp_ge_u32 s2, 256\ns_cbranch_scc1 L0_exit")
    st.init(90)
    a("""
s_load_dwordx4 s[4:7], s[0:1], 8
s_load_dwordx2 s[8:9], s[0:1], 24
s_load_dwordx4 s[12:15], s[0:1], 56
s_load_dwordx2 s[10:11], s[0:1], 88
v_lshrrev_b32 v2, 6, v0
v_and_b32 v1, 63, v0
v_readfirstlane_b32 s3, v2
s_and_b32 s36, s2, 7
s_lshr_b32 s37, s2, 3
""")
    a("""
v_lshrrev_b32 v3, 3, v1
s_lshl_b32 s38, s37, 3
s_add_u32 s38, s38, s3
s_lshl_b32 s38, s38, 13
s_lshl_b32 s39, s36, 7
s_add_u32 s38, s38, s39
v_lshl_add_u32 v3, v3, 10, s38
v_bfe_u32 v4, v1, 4, 1
v_lshlrev_b32 v4, 1, v4
s_add_u32 s39, s3, 1
s_and_b32 s39, s39, 1
s_lshl_b32 s39, s39, 2
v_and_b32 v5, 7, v1
v_xor_b32 v4, v4, v5
v_xor_b32 v4, s39, v4
v_lshl_add_u32 v3, v4, 4, v3
v_subrev_u32 v6, 0x4000, v3
s_mov_b32 s40, 0x8000
s_lshl_b32 s41, s3, 10
s_waitcnt lgkmcnt(0)
""")
    srd(a, 16, 4, 0x200000); srd(a, 20, 6, 0x200000)
    a("s_add_u32 m0, s41, 1024")
    a.vmem(f"buffer_load_dwordx4 v3, s[16:19], 0 offen {NT} lds")
    a("s_add_u32 m0, s41, 9216")
    a.vmem(f"buffer_load_dwordx4 v3, s[20:23], 0 offen {NT} lds")
    a("s_add_u32 m0, s41, 5120")
    a.vmem(f"buffer_load_dwordx4 v3, s[16:19], s40 offen {NT} lds")
    a("s_add_u32 m0, s41, 13312")
    a.vmem(f"buffer_load_dwordx4 v3, s[20:23], s40 offen {NT} lds")
    a("""
s_cmp_lg_u32 s3, 1
s_cbranch_scc1 L0_nohalo
s_mov_b32 m0, 0
s_nop 0
buffer_load_dwordx4 v6, s[16:19], 0 offen lds
L0_nohalo:
""")
    srd(a, 24, 8, 4096); srd(a, 32, 10, WS_SIZE)
    a("""
v_and_b32 v7, 15, v1
s_lshl_b32 s38, s36, 6
s_lshl_b32 s39, s3, 4
s_add_u32 s38, s38, s39
v_add_u32 v8, s38, v7
v_lshlrev_b32 v9, 3, v8
""")
    tsh = a.vmem("buffer_load_dwordx2 v[10:11], v9, s[24:27], 0 offen")
    a("""
s_lshl_b32 s42, s2, 2
s_add_u32 s42, s42, s3
s_movk_i32 s44, 3584
s_cmp_ge_u32 s42, 448
s_cselect_b32 s43, 1, 0
s_cselect_b32 s28, s14, s12
s_cselect_b32 s29, s15, s13
s_cselect_b32 s44, 1024, s44
s_mov_b32 s31, 0x20000
s_cmp_ge_u32 s42, 896
s_cselect_b32 s30, 0, 0x1c0000
s_and_b32 s45, s42, 15
s_lshr_b32 s46, s42, 4
s_sub_u32 s47, s42, 448
s_lshr_b32 s48, s47, 3
s_and_b32 s49, s47, 7
s_cmp_eq_u32 s43, 1
s_cselect_b32 s50, s48, s45
s_cselect_b32 s51, s49, s46
s_lshl_b32 s50, s50, 5
s_mul_i32 s50, s50, s44
s_lshl_b32 s51, s51, 7
s_add_u32 s50, s50, s51
s_lshl_b32 s51, s44, 3
v_lshrrev_b32 v12, 3, v1
v_mul_lo_u32 v12, v12, s44
v_lshl_add_u32 v12, v5, 4, v12
s_lshl_b32 s52, s3, 12
s_add_u32 s52, s52, 17408
""")
    for i in range(4):
        a(f"s_add_u32 m0, s52, {i*1024}")
        tw = a.vmem(f"buffer_load_dwordx4 v12, s[28:31], s50 offen {NT} lds")
        if i < 3: a("s_add_u32 s50, s50, s51")
    a("""
v_lshrrev_b32 v13, 4, v1
v_bfe_u32 v14, v1, 2, 2
v_lshl_add_u32 v15, v13, 3, v14
v_add_u32 v15, 8, v15
v_lshlrev_b32 v15, 7, v15
v_bfe_u32 v16, v1, 1, 1
s_lshl_b32 s38, s3, 1
v_add_u32 v16, s38, v16
v_bfe_u32 v17, v1, 3, 1
v_lshlrev_b32 v17, 1, v17
v_xor_b32 v16, v16, v17
v_add_u32 v17, 1, v13
v_and_b32 v17, 1, v17
v_lshlrev_b32 v17, 2, v17
v_xor_b32 v16, v16, v17
v_lshl_add_u32 v15, v16, 4, v15
v_and_b32 v17, 1, v1
v_lshl_add_u32 v15, v17, 3, v15
v_xor_b32 v16, 64, v15
v_subrev_u32 v16, 512, v16
""")
    a(f"""
v_lshrrev_b32 v18, 1, v8
v_lshlrev_b32 v18, 13, v18
v_lshl_add_u32 v18, v17, 6, v18
v_sub_u32 v19, 3, v13
v_lshl_add_u32 v18, v19, 4, v18
s_lshl_b32 s38, s37, 8
s_sub_u32 s53, {KVT + 62*128}, s38
s_mov_b32 s54, 0xffff
s_mov_b32 s55, 0xffff0000
""")
    a.wait(vm=tsh)
    a("""
v_alignbit_b32 v20, v10, v10, 16
v_alignbit_b32 v21, v11, v11, 16
v_and_b32 v22, s54, v10
v_bfi_b32 v23, s54, v11, v10
v_and_b32 v24, s55, v11
s_barrier
""")
    st.cyc()
    toks = []
    for u in range(2):
        K = 32 + 16*u; V = K + 6
        toks.append([a.lds(f"ds_read_b64_tr_b16 v[{K}:{K+1}], v16 offset:{u*4096}"),
                     a.lds(f"ds_read_b64_tr_b16 v[{K+2}:{K+3}], v15 offset:{u*4096}"),
                     a.lds(f"ds_read_b64_tr_b16 v[{K+4}:{K+5}], v15 offset:{u*4096+512}"),
                     a.lds(f"ds_read_b64_tr_b16 v[{V}:{V+1}], v15 offset:{u*4096+8192}"),
                     a.lds(f"ds_read_b64_tr_b16 v[{V+2}:{V+3}], v15 offset:{u*4096+8192+512}")])
    for u in range(2):
        K = 32 + 16*u; V = K + 6; E = 64; P = 72; O = 80 + 4*u
        a.wait(lg=toks[u][2])
        for i in range(4):
            a(f"v_dot2_f32_bf16 v{E+2*i}, v{K+i+2}, v22, 0")
            a(f"v_dot2_f32_bf16 v{E+2*i+1}, v{K+i+2}, v20, 0")
        for i in range(4):
            a(f"v_dot2_f32_bf16 v{E+2*i}, v{K+i+1}, v23, v{E+2*i}")
            a(f"v_dot2_f32_bf16 v{E+2*i+1}, v{K+i+1}, v21, v{E+2*i+1}")
        for i in range(4):
            a(f"v_dot2_f32_bf16 v{E+2*i}, v{K+i}, v24, v{E+2*i}")
        a.wait(lg=toks[u][4])
        for i in range(4):
            a(f"v_lshlrev_b32 v{P+2*i}, 16, v{V+i}")
            a(f"v_and_b32 v{P+2*i+1}, s55, v{V+i}")
        for i in range(4):
            a(f"v_pk_mul_f32 v[{E+2*i}:{E+2*i+1}], v[{E+2*i}:{E+2*i+1}], v[{P+2*i}:{P+2*i+1}]")
        for i in range(4):
            a(f"v_cvt_pk_bf16_f32 v{O+3-i}, v{E+2*i+1}, v{E+2*i}")
        a.vmem(f"buffer_store_dwordx4 v[{O}:{O+3}], v18, s[32:35], s53 offen offset:{128*(1-u)}")
    st.cyc()
    a(f"""
s_cmp_ge_u32 s42, 896
s_cbranch_scc1 L0_now
v_lshlrev_b32 v25, 4, v1
s_waitcnt vmcnt(2)
s_cmp_eq_u32 s43, 1
s_cbranch_scc1 L0_w2
v_lshl_add_u32 v26, v13, 3, v14
v_lshlrev_b32 v26, 7, v26
v_and_b32 v27, 3, v1
v_lshl_add_u32 v26, v27, 3, v26
v_add_u32 v26, s52, v26
s_lshl_b32 s46, s46, 16
s_lshl_b32 s45, s45, 10
s_add_u32 s46, s46, s45
s_add_u32 s46, s46, {W1R}
""")
    for b in range(4):
        for hh in range(2):
            a(f"ds_read_b64_tr_b16 v[{32+4*b+2*hh}:{33+4*b+2*hh}], v26 offset:{32*b+512*hh}")
    for b in range(4):
        a(f"s_waitcnt lgkmcnt({6-2*b})")
        a(f"buffer_store_dwordx4 v[{32+4*b}:{35+4*b}], v25, s[32:35], s46 offen")
        if b < 3: a("s_add_u32 s46, s46, 16384")
    a(f"""
s_branch L0_end
L0_w2:
v_lshrrev_b32 v26, 5, v1
v_lshl_add_u32 v26, v26, 3, v14
v_lshlrev_b32 v26, 7, v26
v_and_b32 v27, 1, v13
v_lshl_add_u32 v26, v27, 5, v26
v_lshl_add_u32 v26, v17, 4, v26
v_bfe_u32 v27, v1, 1, 1
v_lshl_add_u32 v26, v27, 3, v26
v_add_u32 v26, s52, v26
s_mul_i32 s45, s48, 37
s_lshr_b32 s45, s45, 8
s_mul_i32 s46, s45, 7
s_sub_u32 s46, s48, s46
s_lshl_b32 s45, s45, 4
s_lshl_b32 s49, s49, 1
s_add_u32 s45, s45, s49
s_mul_i32 s45, s45, 14
s_lshl_b32 s46, s46, 1
s_add_u32 s45, s45, s46
s_lshl_b32 s45, s45, 10
s_add_u32 s45, s45, {W2R}
s_add_u32 s46, s45, 14336
""")
    for b in range(4):
        kk, Cb = b >> 1, b & 1
        for hh in range(2):
            a(f"ds_read_b64_tr_b16 v[{32+4*b+2*hh}:{33+4*b+2*hh}], v26 offset:{2048*kk+64*Cb+512*hh}")
    for b in range(4):
        kk, Cb = b >> 1, b & 1
        a(f"s_waitcnt lgkmcnt({6-2*b})")
        a(f"buffer_store_dwordx4 v[{32+4*b}:{35+4*b}], v25, s[32:35], s{45+Cb} offen offset:{1024*kk}")
    a(f"""
s_branch L0_end
L0_now:
s_cmp_lg_u32 s2, 255
s_cbranch_scc1 L0_end
v_mov_b32 v32, 0
v_mov_b32 v33, 0
v_mov_b32 v34, 0
v_mov_b32 v35, 0
v_lshlrev_b32 v25, 4, v0
s_mov_b32 s45, {FL}
s_mov_b32 s46, {FL+4096}
buffer_store_dwordx4 v[32:35], v25, s[32:35], s45 offen
buffer_store_dwordx4 v[32:35], v25, s[32:35], s46 offen
L0_end:
""")
    if ST: a("s_waitcnt vmcnt(0)")
    st.flush(91, 3)
    a("L0_exit:\ns_endpgm")
    return a

HC_STR = 4160
UR = 8*HC_STR
UR_STR = 4608
RED = UR + 2*UR_STR
K1_LDS = RED + 32768
def gen_k1(YG=False, NT="", ST=False):
    a = Asm(); st = Stamps(a, ST, 1)
    a("s_cmp_ge_u32 s2, 256\ns_cbranch_scc1 L1_end")
    st.init(176)
    a("""
s_load_dwordx4 s[4:7], s[0:1], 32
s_load_dwordx2 s[10:11], s[0:1], 88
v_lshrrev_b32 v2, 6, v0
v_and_b32 v1, 63, v0
v_readfirstlane_b32 s3, v2
s_and_b32 s36, s2, 7
s_lshr_b32 s37, s2, 3
s_lshl_b32 s38, s36, 5
s_add_u32 s38, s38, s37
s_lshl_b32 s39, s38, 13
s_add_u32 s40, s39, 4096
v_lshlrev_b32 v3, 4, v0
v_subrev_u32 v4, 8, v3
v_cmp_eq_u32 vcc, 0, v0
v_mov_b32 v5, 0x40000000
v_lshrrev_b32 v6, 2, v0
v_cndmask_b32 v4, v4, v5, vcc
v_lshlrev_b32 v6, 7, v6
v_and_b32 v7, 3, v0
v_lshl_add_u32 v6, v7, 4, v6
s_lshl_b32 s41, s3, 10
s_lshl_b32 s44, s38, 2
s_waitcnt lgkmcnt(0)
""")
    srd(a, 16, 4, 0x200000); srd(a, 32, 10, WS_SIZE)
    a("s_load_dword s45, s[6:7], s44")
    th = []
    for c in range(2):
        H = 16 + 8*c
        a.vmem(f"buffer_load_dwordx4 v[{H+2}:{H+5}], v3, s[16:19], s{39+c} offen {NT}")
        th.append(a.vmem(f"buffer_load_dwordx2 v[{H}:{H+1}], v4, s[16:19], s{39+c} offen {NT}"))
    a(f"s_add_u32 s42, s39, {KVT}\ns_add_u32 s43, s42, 64")
    for c in range(2):
        a(f"s_add_u32 m0, s41, {UR + c*UR_STR}")
        tu = a.vmem(f"buffer_load_dwordx4 v6, s[32:35], s{42+c} offen lds")
    a(f"""
v_mov_b32 v8, 0
v_mov_b32 v9, 0
v_mov_b32 v10, 0
v_mov_b32 v11, 0
v_lshrrev_b32 v12, 5, v1
v_mul_u32_u24 v12, {UR_STR}, v12
v_and_b32 v13, 31, v1
v_lshl_add_u32 v12, v13, 4, v12
v_add_u32 v12, {UR+4096}, v12
v_bfe_u32 v13, v1, 1, 3
v_mul_u32_u24 v13, {HC_STR}, v13
v_and_b32 v14, 1, v1
v_lshl_add_u32 v13, v14, 4, v13
v_add_u32 v13, 32, v13
v_cmp_gt_u32 vcc, 64, v0
s_nop 1
v_cndmask_b32 v12, v13, v12, vcc
""")
    a.lds("ds_write_b128 v12, v[8:11]")
    a(f"""
v_and_b32 v8, 15, v1
v_lshrrev_b32 v9, 4, v1
v_sub_u32 v10, 15, v8
v_and_b32 v11, 3, v10
v_mul_u32_u24 v12, {HC_STR}, v11
v_lshrrev_b32 v10, 2, v10
v_lshlrev_b32 v10, 3, v10
v_sub_u32 v12, v12, v10
v_lshl_add_u32 v12, v9, 4, v12
s_lshr_b32 s46, s3, 1
s_and_b32 s47, s3, 1
s_lshl_b32 s47, s47, 8
s_mul_i32 s48, s46, {4*HC_STR}
s_add_u32 s48, s48, s47
s_add_u32 s48, s48, 64
v_add_u32 v12, s48, v12
s_mul_i32 s48, s46, {UR_STR}
s_add_u32 s48, s48, s47
s_add_u32 s48, s48, {UR + 4064 - 3584}
v_lshlrev_b32 v13, 5, v8
v_sub_u32 v13, s48, v13
v_lshl_add_u32 v13, v9, 4, v13
""")
    st.cyc()
    for c in range(2):
        H = 16 + 8*c
        a.wait(vm=th[c])
        base = c*4*HC_STR + 64
        a.lds(f"ds_write_b128 v3, v[{H+2}:{H+5}] offset:{base}")
        for i in range(4): a(f"v_alignbit_b32 v{32+i}, v{H+2+i}, v{H+1+i}, 16")
        a.lds(f"ds_write_b128 v3, v[32:35] offset:{base+HC_STR}")
        for i in range(4): a(f"v_mov_b32 v{36+i}, v{H+1+i}")
        a.lds(f"ds_write_b128 v3, v[36:39] offset:{base+2*HC_STR}")
        for i in range(4): a(f"v_alignbit_b32 v{40+i}, v{H+1+i}, v{H+i}, 16")
        a.lds(f"ds_write_b128 v3, v[40:43] offset:{base+3*HC_STR}")
        if c == 0: a.wait(lg='all')
    a.wait(vm='all', lg='all')
    a("s_barrier")
    st.cyc()
    ACC = 16; AF = [48, 112]; BF = [80, 144]
    def reads(e):
        p = e & 1; L = []
        for k in range(8):
            L.append(f"ds_read_b64 v[{AF[p]+4*k}:{AF[p]+4*k+1}], v12 offset:{512*k+64*e}")
            L.append(f"ds_read_b64 v[{AF[p]+4*k+2}:{AF[p]+4*k+3}], v12 offset:{512*k+64*e+8}")
            L.append(f"ds_read_b128 v[{BF[p]+4*k}:{BF[p]+4*k+3}], v13 offset:{512*(7-k)+64*e}")
        return L
    order = []
    for k in range(8):
        order.append([(g, k) for g in range(k) if g+k <= 7] + [(k, b) for b in range(k+1) if k+b <= 7])
    r0 = reads(0); tk = []
    for s in r0[:15]: tk.append(a.lds(s))
    pend = r0[15:]
    seen = set()
    for e in range(4):
        p = e & 1
        nxt = reads(e+1) if e < 3 else []
        if e > 0: a.wait(lg='all')
        for k in range(8):
            if e == 0: a.wait(lg=tk[3*k+2])
            for (g, b) in order[k]:
                t = g+b
                c = f"v[{ACC+4*t}:{ACC+4*t+3}]"
                a(f"v_mfma_f32_16x16x32_bf16 {c}, v[{AF[p]+4*g}:{AF[p]+4*g+3}], v[{BF[p]+4*b}:{BF[p]+4*b+3}], {c if t in seen else 0}")
                seen.add(t)
                if pend: tk.append(a.lds(pend.pop(0)))
                elif nxt: a.lds(nxt.pop(0))
        assert not nxt and not pend
    st.cyc()
    a(f"""
v_and_b32 v10, 1, v9
v_lshlrev_b32 v10, 1, v10
v_xor_b32 v10, v10, v8
v_lshlrev_b32 v10, 4, v10
v_lshl_add_u32 v10, v9, 8, v10
s_lshl_b32 s48, s3, 13
s_add_u32 s48, s48, {RED}
v_add_u32 v10, s48, v10
v_and_b32 v4, 1, v1
v_bfe_u32 v5, v1, 1, 4
v_lshrrev_b32 v6, 5, v1
v_lshl_add_u32 v7, v6, 1, v4
v_lshlrev_b32 v11, 1, v4
v_xor_b32 v11, v11, v5
v_lshlrev_b32 v11, 4, v11
v_lshl_add_u32 v11, v7, 8, v11
s_lshl_b32 s48, s3, 11
s_add_u32 s48, s48, {RED}
v_add_u32 v11, s48, v11
""")
    for t in range(8):
        a.lds(f"ds_write_b128 v10, v[{ACC+4*t}:{ACC+4*t+3}] offset:{1024*t}")
    a(f"""
v_lshlrev_b32 v14, 5, v5
v_lshl_add_u32 v14, v7, 3, v14
s_lshl_b32 s48, s3, 10
s_sub_u32 s48, {UR + 4088 - 512}, s48
v_sub_u32 v14, s48, v14
""")
    tu = {}
    for aa in range(2):
        for c in range(2):
            tu[aa, c] = a.lds(f"ds_read_b64 v[{48+4*aa+2*c}:{49+4*aa+2*c}], v14 offset:{c*UR_STR + 512*(1-aa)}")
    a(f"""
s_and_b32 s46, s38, 3
s_lshl_b32 s46, s46, 4
s_lshr_b32 s47, s38, 2
s_and_b32 s47, s47, 15
s_add_u32 s46, s46, s47
s_and_b32 s47, s38, 192
s_add_u32 s46, s46, s47
s_lshl_b32 s46, s46, {7 if YG else 5}
s_lshl_b32 s47, s3, 19
s_add_u32 s46, s46, s47
s_add_u32 s46, s46, {YB}
s_add_u32 s47, s46, {32*8192}
v_lshl_add_u32 v15, v5, 1, v6
""")
    if YG:
        a("v_and_b32 v12, 3, v15\nv_lshrrev_b32 v15, 2, v15\nv_lshlrev_b32 v15, 15, v15\nv_lshl_add_u32 v15, v12, 5, v15")
    else:
        a("v_lshlrev_b32 v15, 13, v15")
    a(f"""
v_lshl_add_u32 v15, v4, 4, v15
s_lshl_b32 s50, s45, 16
s_and_b32 s52, s45, 0xffff0000
s_mov_b32 s51, s50
s_mov_b32 s53, s52
s_mov_b32 s55, 0xffff0000
""")
    a.wait(lg='all')
    a("s_barrier")
    tr = {}
    for aa in range(2):
        for c in range(2):
            for eh in range(2):
                R = 64 + 16*aa + 8*c + 4*eh
                tr[aa, c, eh] = a.lds(f"ds_read_b128 v[{R}:{R+3}], v11 offset:{(2*c+eh)*8192 + aa*1024}")
    for aa in range(2):
        for c in range(2):
            U = 48+4*aa+2*c; F = 100 + 8*aa + 4*c
            a(f"v_and_b32 v{F}, s55, v{U+1}\nv_lshlrev_b32 v{F+1}, 16, v{U+1}\nv_and_b32 v{F+2}, s55, v{U}\nv_lshlrev_b32 v{F+3}, 16, v{U}")
    for aa in range(2):
        a.wait(lg=tr[aa, 1, 1])
        for c in range(2):
            R = 64 + 16*aa + 8*c; F = 100 + 8*aa + 4*c
            for h in range(2):
                a(f"v_pk_add_f32 v[{R+2*h}:{R+2*h+1}], v[{R+2*h}:{R+2*h+1}], v[{R+4+2*h}:{R+5+2*h}]")
            for h in range(2):
                a(f"v_pk_fma_f32 v[{R+2*h}:{R+2*h+1}], v[{F+2*h}:{F+2*h+1}], s[{50+2*c}:{51+2*c}], v[{R+2*h}:{R+2*h+1}]")
        R = 64 + 16*aa; O = 120 + 4*aa
        for r in range(4):
            a(f"v_cvt_pk_bf16_f32 v{O+r}, v{R+r}, v{R+8+r}")
        a.vmem(f"buffer_store_dwordx4 v[{O}:{O+3}], v15, s[32:35], s{46+aa} offen")
    st.cyc()
    if ST: a("s_waitcnt vmcnt(0)")
    st.flush(177, 3)
    a("L1_end:\ns_endpgm")
    return a
```

```python
import sys, re
from build3 import *
DG = 0x0C00000
def mark(slot):
    return f"""s_cmp_lg_u32 s2, 0
s_cbranch_scc1 LD_skip{slot}
s_load_dwordx2 s[88:89], s[0:1], 88
s_memrealtime s[92:93]
s_waitcnt lgkmcnt(0)
s_mov_b32 s90, {WS_SIZE:#x}
s_mov_b32 s91, 0x20000
s_mov_b32 s94, {DG + slot*4}
v_mov_b32 v122, s92
v_mov_b32 v123, 0
s_nop 1
buffer_store_dword v122, v123, s[88:91], s94 offen sc1
s_waitcnt vmcnt(0)
LD_skip{slot}:
"""
def fin(a_, b_, K):
    return f"""s_cmp_lg_u32 s2, 0
s_cbranch_scc1 LD_fin
s_waitcnt vmcnt(0)
s_barrier
s_mov_b32 s94, {DG}
v_mov_b32 v123, 0
buffer_load_dword v30, v123, s[88:91], s94 offen sc1
buffer_load_dword v31, v123, s[88:91], s94 offen offset:{4*a_} sc1
buffer_load_dword v32, v123, s[88:91], s94 offen offset:{4*b_} sc1
s_waitcnt vmcnt(0)
v_readfirstlane_b32 s40, v30
v_readfirstlane_b32 s41, v31
v_readfirstlane_b32 s42, v32
s_nop 3
s_sub_u32 s42, s42, s41
s_min_u32 s42, s42, 6000
s_mul_i32 s42, s42, {K}
s_add_u32 s42, s42, 10000
s_mov_b32 s44, 200000
LD_spin:
s_memrealtime s[92:93]
s_waitcnt lgkmcnt(0)
s_sub_u32 s43, s92, s40
s_sub_u32 s44, s44, 1
s_cbranch_scc1 LD_fin
s_cmp_lt_u32 s43, s42
s_cbranch_scc1 LD_spin
LD_fin:
"""
def make(a_, b_, K, **kw):
    s = build(**kw)
    s = s.replace("next_free_vgpr 96", "next_free_vgpr 128").replace("accum_offset 96", "accum_offset 128")
    s = s.replace("    s_cbranch_scc1 L0_exit\n", "    s_cbranch_scc1 L0_exit\n" + mark(0), 1)
    s = s.replace("    s_cbranch_scc1 L1_end\n", "    s_cbranch_scc1 L1_end\n" + mark(1), 1)
    s = s.replace("    s_cbranch_scc1 L2_end\n", "    s_cbranch_scc1 L2_end\n" + mark(2), 1)
    s = s.replace(".p2align 3\nL2_layer:\n", mark(3) + ".p2align 3\nL2_layer:\n", 1)
    s = s.replace("L2_end:\n", mark(4) + fin(a_, b_, K) + "L2_end:\n", 1)
    return s
if __name__ == "__main__":
    for nm, (a_, b_, K) in {"d0": (0, 0, 0), "d1": (0, 1, 4), "d2": (1, 2, 4), "d3": (2, 3, 4), "d4": (3, 4, 4), "d5": (0, 4, 4)}.items():
        open(f"../var/{nm}.s", "w").write(make(a_, b_, K))
```

```python
from asmlib import *
KVT  = 0x0000000
W1R  = 0x0200000
W2R  = 0x0400000
YB   = 0x0600000
XN   = 0x0800000
FL   = 0x0A00000
PART = 0x1000000
WS_SIZE = 0x2000000

STAMP = 0x0B00000
class Stamps:
    def __init__(self, a, on, kidx, base=84, static=False):
        self.static, self.nc = static, 2
        self.a, self.on, self.k, self.base, self.n = a, on, kidx, base, 0
    def real(self):
        if self.on: self.a(f"s_memrealtime s[{self.base}:{self.base+1}]\ns_waitcnt lgkmcnt(0)\nv_writelane_b32 v{self.reg}, s{self.base}, {self.n}"); self.n += 1; self.a.lg = []
    def cyc(self):
        if not self.on: return
        if self.static:
            self.a(f"s_memtime s[{self.base}:{self.base+1}]\ns_memrealtime s[100:101]\ns_waitcnt lgkmcnt(0)\nv_writelane_b32 v{self.reg}, s{self.base}, {self.nc}\nv_writelane_b32 v{self.reg}, s100, {self.nc+30}"); self.nc += 1
        else:
            self.a(f"s_memtime s[{self.base}:{self.base+1}]\ns_mov_b32 m0, s{self.base+2}\ns_waitcnt lgkmcnt(0)\nv_writelane_b32 v{self.reg}, s{self.base}, m0\ns_add_u32 s{self.base+2}, s{self.base+2}, 1")
        self.a.lg = []
    def init(self, reg):
        self.reg = reg
        if self.on: self.a(f"s_mov_b32 s{self.base+2}, 2\nv_mov_b32 v{reg}, 0"); self.real(); self.cyc()
    def flush(self, tmp, wave):
        if not self.on: return
        self.cyc(); self.real()
        self.a(f"""v_mbcnt_lo_u32_b32 v{tmp}, -1, 0
v_mbcnt_hi_u32_b32 v{tmp}, -1, v{tmp}
v_lshlrev_b32 v{tmp}, 2, v{tmp}
s_lshl_b32 s{self.base}, s2, 2
s_add_u32 s{self.base}, s{self.base}, s{wave}
s_lshl_b32 s{self.base}, s{self.base}, 8
s_add_u32 s{self.base}, s{self.base}, {STAMP + self.k*0x40000}
buffer_store_dword v{self.reg}, v{tmp}, s[32:35], s{self.base} offen""")

def srd(a, d, b, size):
    a(f"s_mov_b32 s{d}, s{b}\ns_mov_b32 s{d+1}, s{b+1}\ns_mov_b32 s{d+2}, {size:#x}\ns_mov_b32 s{d+3}, 0x20000")

def kd(name, vgpr, accum, sgpr=102):
    return f""".section .rodata,"a"
.p2align 6
.amdhsa_kernel {name}
  .amdhsa_next_free_vgpr {vgpr}
  .amdhsa_next_free_sgpr {sgpr}
  .amdhsa_accum_offset {accum}
  .amdhsa_group_segment_fixed_size 0
  .amdhsa_kernarg_size 96
  .amdhsa_user_sgpr_count 2
  .amdhsa_user_sgpr_kernarg_segment_ptr 1
  .amdhsa_system_sgpr_workgroup_id_x 1
  .amdhsa_float_denorm_mode_32 3
.end_amdhsa_kernel
.text
"""
def head(name):
    return f".text\n.globl {name}\n.p2align 8\n.type {name},@function\n{name}:\n"

def gen_k0(NT="", ST=False, SENT=False, KF="", WF="", PF=None):
    a = Asm(); st = Stamps(a, ST, 0, static=True)
    a("s_cmp_ge_u32 s2, 256\ns_cbranch_scc1 L0_exit")
    st.init(90)
    a("""
s_load_dwordx4 s[4:7], s[0:1], 8
s_load_dwordx2 s[8:9], s[0:1], 24
s_load_dwordx4 s[12:15], s[0:1], 56
s_load_dwordx2 s[10:11], s[0:1], 88
v_lshrrev_b32 v2, 6, v0
v_and_b32 v1, 63, v0
v_readfirstlane_b32 s3, v2
s_and_b32 s36, s2, 7
s_lshr_b32 s37, s2, 3
""")
    a("""
v_lshrrev_b32 v3, 3, v1
s_lshl_b32 s38, s37, 3
s_add_u32 s38, s38, s3
s_lshl_b32 s38, s38, 13
s_lshl_b32 s39, s36, 7
s_add_u32 s38, s38, s39
v_lshl_add_u32 v3, v3, 10, s38
v_bfe_u32 v4, v1, 4, 1
v_lshlrev_b32 v4, 1, v4
s_add_u32 s39, s3, 1
s_and_b32 s39, s39, 1
s_lshl_b32 s39, s39, 2
v_and_b32 v5, 7, v1
v_xor_b32 v4, v4, v5
v_xor_b32 v4, s39, v4
v_lshl_add_u32 v3, v4, 4, v3
v_subrev_u32 v6, 0x4000, v3
s_mov_b32 s40, 0x8000
s_lshl_b32 s41, s3, 10
s_waitcnt lgkmcnt(0)
""")
    srd(a, 16, 4, 0x200000); srd(a, 20, 6, 0x200000)
    a("s_add_u32 m0, s41, 1024")
    a.vmem(f"buffer_load_dwordx4 v3, s[16:19], 0 offen {NT} lds")
    a("s_add_u32 m0, s41, 9216")
    a.vmem(f"buffer_load_dwordx4 v3, s[20:23], 0 offen {NT} lds")
    a("s_add_u32 m0, s41, 5120")
    a.vmem(f"buffer_load_dwordx4 v3, s[16:19], s40 offen {NT} lds")
    a("s_add_u32 m0, s41, 13312")
    a.vmem(f"buffer_load_dwordx4 v3, s[20:23], s40 offen {NT} lds")
    a("""
s_cmp_lg_u32 s3, 1
s_cbranch_scc1 L0_nohalo
s_mov_b32 m0, 0
s_nop 0
buffer_load_dwordx4 v6, s[16:19], 0 offen lds
L0_nohalo:
""")
    srd(a, 24, 8, 4096); srd(a, 32, 10, WS_SIZE)
    a("""
v_and_b32 v7, 15, v1
s_lshl_b32 s38, s36, 6
s_lshl_b32 s39, s3, 4
s_add_u32 s38, s38, s39
v_add_u32 v8, s38, v7
v_lshlrev_b32 v9, 3, v8
""")
    tsh = a.vmem("buffer_load_dwordx2 v[10:11], v9, s[24:27], 0 offen")
    a("""
s_lshl_b32 s42, s2, 2
s_add_u32 s42, s42, s3
s_movk_i32 s44, 3584
s_cmp_ge_u32 s42, 448
s_cselect_b32 s43, 1, 0
s_cselect_b32 s28, s14, s12
s_cselect_b32 s29, s15, s13
s_cselect_b32 s44, 1024, s44
s_mov_b32 s31, 0x20000
s_cmp_ge_u32 s42, 896
s_cselect_b32 s30, 0, 0x1c0000
s_and_b32 s45, s42, 15
s_lshr_b32 s46, s42, 4
s_sub_u32 s47, s42, 448
s_lshr_b32 s48, s47, 3
s_and_b32 s49, s47, 7
s_cmp_eq_u32 s43, 1
s_cselect_b32 s50, s48, s45
s_cselect_b32 s51, s49, s46
s_lshl_b32 s50, s50, 5
s_mul_i32 s50, s50, s44
s_lshl_b32 s51, s51, 7
s_add_u32 s50, s50, s51
s_lshl_b32 s51, s44, 3
v_lshrrev_b32 v12, 3, v1
v_mul_lo_u32 v12, v12, s44
v_lshl_add_u32 v12, v5, 4, v12
s_lshl_b32 s52, s3, 12
s_add_u32 s52, s52, 17408
""")
    for i in range(4):
        a(f"s_add_u32 m0, s52, {i*1024}")
        tw = a.vmem(f"buffer_load_dwordx4 v12, s[28:31], s50 offen {NT} lds")
        if i < 3: a("s_add_u32 s50, s50, s51")
    if SENT:
        a(f"""
v_mov_b32 v28, -1
v_mov_b32 v29, -1
v_mov_b32 v30, -1
v_mov_b32 v31, -1
v_lshlrev_b32 v25, 4, v0
s_lshl_b32 s56, s2, 13
s_add_u32 s56, s56, {YB}
s_add_u32 s57, s56, 4096
""")
        a.vmem("buffer_store_dwordx4 v[28:31], v25, s[32:35], s56 offen sc1")
        a.vmem("buffer_store_dwordx4 v[28:31], v25, s[32:35], s57 offen sc1")
    if PF:
        a(f"""
s_getpc_b64 s[58:59]
L0_pc:
s_add_u32 s58, s58, {PF[0]}-L0_pc
s_addc_u32 s59, s59, 0
v_lshlrev_b32 v26, 7, v0
v_min_u32 v26, {PF[1]}-{PF[0]}-4, v26
""")
        a.vmem("global_load_dword v26, v26, s[58:59]")
    a("""
v_lshrrev_b32 v13, 4, v1
v_bfe_u32 v14, v1, 2, 2
v_lshl_add_u32 v15, v13, 3, v14
v_add_u32 v15, 8, v15
v_lshlrev_b32 v15, 7, v15
v_bfe_u32 v16, v1, 1, 1
s_lshl_b32 s38, s3, 1
v_add_u32 v16, s38, v16
v_bfe_u32 v17, v1, 3, 1
v_lshlrev_b32 v17, 1, v17
v_xor_b32 v16, v16, v17
v_add_u32 v17, 1, v13
v_and_b32 v17, 1, v17
v_lshlrev_b32 v17, 2, v17
v_xor_b32 v16, v16, v17
v_lshl_add_u32 v15, v16, 4, v15
v_and_b32 v17, 1, v1
v_lshl_add_u32 v15, v17, 3, v15
v_xor_b32 v16, 64, v15
v_subrev_u32 v16, 512, v16
""")
    a(f"""
v_lshrrev_b32 v18, 1, v8
v_lshlrev_b32 v18, 13, v18
v_lshl_add_u32 v18, v17, 6, v18
v_sub_u32 v19, 3, v13
v_lshl_add_u32 v18, v19, 4, v18
s_lshl_b32 s38, s37, 8
s_sub_u32 s53, {KVT + 62*128}, s38
s_mov_b32 s54, 0xffff
s_mov_b32 s55, 0xffff0000
""")
    a.wait(vm=tsh)
    a("""
v_alignbit_b32 v20, v10, v10, 16
v_alignbit_b32 v21, v11, v11, 16
v_and_b32 v22, s54, v10
v_bfi_b32 v23, s54, v11, v10
v_and_b32 v24, s55, v11
s_barrier
""")
    st.cyc()
    toks = []
    for u in range(2):
        K = 32 + 16*u; V = K + 6
        toks.append([a.lds(f"ds_read_b64_tr_b16 v[{K}:{K+1}], v16 offset:{u*4096}"),
                     a.lds(f"ds_read_b64_tr_b16 v[{K+2}:{K+3}], v15 offset:{u*4096}"),
                     a.lds(f"ds_read_b64_tr_b16 v[{K+4}:{K+5}], v15 offset:{u*4096+512}"),
                     a.lds(f"ds_read_b64_tr_b16 v[{V}:{V+1}], v15 offset:{u*4096+8192}"),
                     a.lds(f"ds_read_b64_tr_b16 v[{V+2}:{V+3}], v15 offset:{u*4096+8192+512}")])
    for u in range(2):
        K = 32 + 16*u; V = K + 6; E = 64; P = 72; O = 80 + 4*u
        a.wait(lg=toks[u][2])
        for i in range(4):
            a(f"v_dot2_f32_bf16 v{E+2*i}, v{K+i+2}, v22, 0")
            a(f"v_dot2_f32_bf16 v{E+2*i+1}, v{K+i+2}, v20, 0")
        for i in range(4):
            a(f"v_dot2_f32_bf16 v{E+2*i}, v{K+i+1}, v23, v{E+2*i}")
            a(f"v_dot2_f32_bf16 v{E+2*i+1}, v{K+i+1}, v21, v{E+2*i+1}")
        for i in range(4):
            a(f"v_dot2_f32_bf16 v{E+2*i}, v{K+i}, v24, v{E+2*i}")
        a.wait(lg=toks[u][4])
        for i in range(4):
            a(f"v_lshlrev_b32 v{P+2*i}, 16, v{V+i}")
            a(f"v_and_b32 v{P+2*i+1}, s55, v{V+i}")
        for i in range(4):
            a(f"v_pk_mul_f32 v[{E+2*i}:{E+2*i+1}], v[{E+2*i}:{E+2*i+1}], v[{P+2*i}:{P+2*i+1}]")
        for i in range(4):
            a(f"v_cvt_pk_bf16_f32 v{O+3-i}, v{E+2*i+1}, v{E+2*i}")
        a.vmem(f"buffer_store_dwordx4 v[{O}:{O+3}], v18, s[32:35], s53 offen offset:{128*(1-u)} {KF}")
    st.cyc()
    a(f"""
s_cmp_ge_u32 s42, 896
s_cbranch_scc1 L0_now
v_lshlrev_b32 v25, 4, v1
s_waitcnt vmcnt(2)
s_cmp_eq_u32 s43, 1
s_cbranch_scc1 L0_w2
v_lshl_add_u32 v26, v13, 3, v14
v_lshlrev_b32 v26, 7, v26
v_and_b32 v27, 3, v1
v_lshl_add_u32 v26, v27, 3, v26
v_add_u32 v26, s52, v26
s_lshl_b32 s46, s46, 16
s_lshl_b32 s45, s45, 10
s_add_u32 s46, s46, s45
s_add_u32 s46, s46, {W1R}
""")
    for b in range(4):
        for hh in range(2):
            a(f"ds_read_b64_tr_b16 v[{32+4*b+2*hh}:{33+4*b+2*hh}], v26 offset:{32*b+512*hh}")
    for b in range(4):
        a(f"s_waitcnt lgkmcnt({6-2*b})")
        a(f"buffer_store_dwordx4 v[{32+4*b}:{35+4*b}], v25, s[32:35], s46 offen {WF}")
        if b < 3: a("s_add_u32 s46, s46, 16384")
    a(f"""
s_branch L0_end
L0_w2:
v_lshrrev_b32 v26, 5, v1
v_lshl_add_u32 v26, v26, 3, v14
v_lshlrev_b32 v26, 7, v26
v_and_b32 v27, 1, v13
v_lshl_add_u32 v26, v27, 5, v26
v_lshl_add_u32 v26, v17, 4, v26
v_bfe_u32 v27, v1, 1, 1
v_lshl_add_u32 v26, v27, 3, v26
v_add_u32 v26, s52, v26
s_mul_i32 s45, s48, 37
s_lshr_b32 s45, s45, 8
s_mul_i32 s46, s45, 7
s_sub_u32 s46, s48, s46
s_lshl_b32 s45, s45, 4
s_lshl_b32 s49, s49, 1
s_add_u32 s45, s45, s49
s_mul_i32 s45, s45, 14
s_lshl_b32 s46, s46, 1
s_add_u32 s45, s45, s46
s_lshl_b32 s45, s45, 10
s_add_u32 s45, s45, {W2R}
s_add_u32 s46, s45, 14336
""")
    for b in range(4):
        kk, Cb = b >> 1, b & 1
        for hh in range(2):
            a(f"ds_read_b64_tr_b16 v[{32+4*b+2*hh}:{33+4*b+2*hh}], v26 offset:{2048*kk+64*Cb+512*hh}")
    for b in range(4):
        kk, Cb = b >> 1, b & 1
        a(f"s_waitcnt lgkmcnt({6-2*b})")
        a(f"buffer_store_dwordx4 v[{32+4*b}:{35+4*b}], v25, s[32:35], s{45+Cb} offen offset:{1024*kk} {WF}")
    a(f"""
s_branch L0_end
L0_now:
s_cmp_lg_u32 s2, 255
s_cbranch_scc1 L0_end
v_mov_b32 v32, 0
v_mov_b32 v33, 0
v_mov_b32 v34, 0
v_mov_b32 v35, 0
v_lshlrev_b32 v25, 4, v0
s_mov_b32 s45, {FL}
s_mov_b32 s46, {FL+4096}
buffer_store_dwordx4 v[32:35], v25, s[32:35], s45 offen sc1
buffer_store_dwordx4 v[32:35], v25, s[32:35], s46 offen sc1
L0_end:
""")
    if ST: a("s_waitcnt vmcnt(0)")
    st.flush(91, 3)
    a("L0_exit:\ns_endpgm")
    return a

HC_STR = 4160
UR = 8*HC_STR
UR_STR = 4608
RED = UR + 2*UR_STR
K1_LDS = RED + 32768
def gen_k1(YG=False, NT="", ST=False):
    a = Asm(); st = Stamps(a, ST, 1)
    a("s_cmp_ge_u32 s2, 256\ns_cbranch_scc1 L1_end")
    st.init(176)
    a("""
s_load_dwordx4 s[4:7], s[0:1], 32
s_load_dwordx2 s[10:11], s[0:1], 88
v_lshrrev_b32 v2, 6, v0
v_and_b32 v1, 63, v0
v_readfirstlane_b32 s3, v2
s_and_b32 s36, s2, 7
s_lshr_b32 s37, s2, 3
s_lshl_b32 s38, s36, 5
s_add_u32 s38, s38, s37
s_lshl_b32 s39, s38, 13
s_add_u32 s40, s39, 4096
v_lshlrev_b32 v3, 4, v0
v_subrev_u32 v4, 8, v3
v_cmp_eq_u32 vcc, 0, v0
v_mov_b32 v5, 0x40000000
v_lshrrev_b32 v6, 2, v0
v_cndmask_b32 v4, v4, v5, vcc
v_lshlrev_b32 v6, 7, v6
v_and_b32 v7, 3, v0
v_lshl_add_u32 v6, v7, 4, v6
s_lshl_b32 s41, s3, 10
s_lshl_b32 s44, s38, 2
s_waitcnt lgkmcnt(0)
""")
    srd(a, 16, 4, 0x200000); srd(a, 32, 10, WS_SIZE)
    a("s_load_dword s45, s[6:7], s44")
    th = []
    for c in range(2):
        H = 16 + 8*c
        a.vmem(f"buffer_load_dwordx4 v[{H+2}:{H+5}], v3, s[16:19], s{39+c} offen {NT}")
        th.append(a.vmem(f"buffer_load_dwordx2 v[{H}:{H+1}], v4, s[16:19], s{39+c} offen {NT}"))
    a(f"s_add_u32 s42, s39, {KVT}\ns_add_u32 s43, s42, 64")
    for c in range(2):
        a(f"s_add_u32 m0, s41, {UR + c*UR_STR}")
        tu = a.vmem(f"buffer_load_dwordx4 v6, s[32:35], s{42+c} offen lds")
    a(f"""
v_mov_b32 v8, 0
v_mov_b32 v9, 0
v_mov_b32 v10, 0
v_mov_b32 v11, 0
v_lshrrev_b32 v12, 5, v1
v_mul_u32_u24 v12, {UR_STR}, v12
v_and_b32 v13, 31, v1
v_lshl_add_u32 v12, v13, 4, v12
v_add_u32 v12, {UR+4096}, v12
v_bfe_u32 v13, v1, 1, 3
v_mul_u32_u24 v13, {HC_STR}, v13
v_and_b32 v14, 1, v1
v_lshl_add_u32 v13, v14, 4, v13
v_add_u32 v13, 32, v13
v_cmp_gt_u32 vcc, 64, v0
s_nop 1
v_cndmask_b32 v12, v13, v12, vcc
""")
    a.lds("ds_write_b128 v12, v[8:11]")
    a(f"""
v_and_b32 v8, 15, v1
v_lshrrev_b32 v9, 4, v1
v_sub_u32 v10, 15, v8
v_and_b32 v11, 3, v10
v_mul_u32_u24 v12, {HC_STR}, v11
v_lshrrev_b32 v10, 2, v10
v_lshlrev_b32 v10, 3, v10
v_sub_u32 v12, v12, v10
v_lshl_add_u32 v12, v9, 4, v12
s_lshr_b32 s46, s3, 1
s_and_b32 s47, s3, 1
s_lshl_b32 s47, s47, 8
s_mul_i32 s48, s46, {4*HC_STR}
s_add_u32 s48, s48, s47
s_add_u32 s48, s48, 64
v_add_u32 v12, s48, v12
s_mul_i32 s48, s46, {UR_STR}
s_add_u32 s48, s48, s47
s_add_u32 s48, s48, {UR + 4064 - 3584}
v_lshlrev_b32 v13, 5, v8
v_sub_u32 v13, s48, v13
v_lshl_add_u32 v13, v9, 4, v13
""")
    st.cyc()
    for c in range(2):
        H = 16 + 8*c
        a.wait(vm=th[c])
        base = c*4*HC_STR + 64
        a.lds(f"ds_write_b128 v3, v[{H+2}:{H+5}] offset:{base}")
        for i in range(4): a(f"v_alignbit_b32 v{32+i}, v{H+2+i}, v{H+1+i}, 16")
        a.lds(f"ds_write_b128 v3, v[32:35] offset:{base+HC_STR}")
        for i in range(4): a(f"v_mov_b32 v{36+i}, v{H+1+i}")
        a.lds(f"ds_write_b128 v3, v[36:39] offset:{base+2*HC_STR}")
        for i in range(4): a(f"v_alignbit_b32 v{40+i}, v{H+1+i}, v{H+i}, 16")
        a.lds(f"ds_write_b128 v3, v[40:43] offset:{base+3*HC_STR}")
        if c == 0: a.wait(lg='all')
    a.wait(vm='all', lg='all')
    a("s_barrier")
    st.cyc()
    ACC = 16; AF = [48, 112]; BF = [80, 144]
    def reads(e):
        p = e & 1; L = []
        for k in range(8):
            L.append(f"ds_read_b64 v[{AF[p]+4*k}:{AF[p]+4*k+1}], v12 offset:{512*k+64*e}")
            L.append(f"ds_read_b64 v[{AF[p]+4*k+2}:{AF[p]+4*k+3}], v12 offset:{512*k+64*e+8}")
            L.append(f"ds_read_b128 v[{BF[p]+4*k}:{BF[p]+4*k+3}], v13 offset:{512*(7-k)+64*e}")
        return L
    order = []
    for k in range(8):
        order.append([(g, k) for g in range(k) if g+k <= 7] + [(k, b) for b in range(k+1) if k+b <= 7])
    r0 = reads(0); tk = []
    for s in r0[:15]: tk.append(a.lds(s))
    pend = r0[15:]
    seen = set()
    for e in range(4):
        p = e & 1
        nxt = reads(e+1) if e < 3 else []
        if e > 0: a.wait(lg='all')
        for k in range(8):
            if e == 0: a.wait(lg=tk[3*k+2])
            for (g, b) in order[k]:
                t = g+b
                c = f"v[{ACC+4*t}:{ACC+4*t+3}]"
                a(f"v_mfma_f32_16x16x32_bf16 {c}, v[{AF[p]+4*g}:{AF[p]+4*g+3}], v[{BF[p]+4*b}:{BF[p]+4*b+3}], {c if t in seen else 0}")
                seen.add(t)
                if pend: tk.append(a.lds(pend.pop(0)))
                elif nxt: a.lds(nxt.pop(0))
        assert not nxt and not pend
    st.cyc()
    a(f"""
v_and_b32 v10, 1, v9
v_lshlrev_b32 v10, 1, v10
v_xor_b32 v10, v10, v8
v_lshlrev_b32 v10, 4, v10
v_lshl_add_u32 v10, v9, 8, v10
s_lshl_b32 s48, s3, 13
s_add_u32 s48, s48, {RED}
v_add_u32 v10, s48, v10
v_and_b32 v4, 1, v1
v_bfe_u32 v5, v1, 1, 4
v_lshrrev_b32 v6, 5, v1
v_lshl_add_u32 v7, v6, 1, v4
v_lshlrev_b32 v11, 1, v4
v_xor_b32 v11, v11, v5
v_lshlrev_b32 v11, 4, v11
v_lshl_add_u32 v11, v7, 8, v11
s_lshl_b32 s48, s3, 11
s_add_u32 s48, s48, {RED}
v_add_u32 v11, s48, v11
""")
    for t in range(8):
        a.lds(f"ds_write_b128 v10, v[{ACC+4*t}:{ACC+4*t+3}] offset:{1024*t}")
    a(f"""
v_lshlrev_b32 v14, 5, v5
v_lshl_add_u32 v14, v7, 3, v14
s_lshl_b32 s48, s3, 10
s_sub_u32 s48, {UR + 4088 - 512}, s48
v_sub_u32 v14, s48, v14
""")
    tu = {}
    for aa in range(2):
        for c in range(2):
            tu[aa, c] = a.lds(f"ds_read_b64 v[{48+4*aa+2*c}:{49+4*aa+2*c}], v14 offset:{c*UR_STR + 512*(1-aa)}")
    a(f"""
s_and_b32 s46, s38, 3
s_lshl_b32 s46, s46, 4
s_lshr_b32 s47, s38, 2
s_and_b32 s47, s47, 15
s_add_u32 s46, s46, s47
s_and_b32 s47, s38, 192
s_add_u32 s46, s46, s47
s_lshl_b32 s46, s46, {7 if YG else 5}
s_lshl_b32 s47, s3, 19
s_add_u32 s46, s46, s47
s_add_u32 s46, s46, {YB}
s_add_u32 s47, s46, {32*8192}
v_lshl_add_u32 v15, v5, 1, v6
""")
    if YG:
        a("v_and_b32 v12, 3, v15\nv_lshrrev_b32 v15, 2, v15\nv_lshlrev_b32 v15, 15, v15\nv_lshl_add_u32 v15, v12, 5, v15")
    else:
        a("v_lshlrev_b32 v15, 13, v15")
    a(f"""
v_lshl_add_u32 v15, v4, 4, v15
s_lshl_b32 s50, s45, 16
s_and_b32 s52, s45, 0xffff0000
s_mov_b32 s51, s50
s_mov_b32 s53, s52
s_mov_b32 s55, 0xffff0000
""")
    a.wait(lg='all')
    a("s_barrier")
    tr = {}
    for aa in range(2):
        for c in range(2):
            for eh in range(2):
                R = 64 + 16*aa + 8*c + 4*eh
                tr[aa, c, eh] = a.lds(f"ds_read_b128 v[{R}:{R+3}], v11 offset:{(2*c+eh)*8192 + aa*1024}")
    for aa in range(2):
        for c in range(2):
            U = 48+4*aa+2*c; F = 100 + 8*aa + 4*c
            a(f"v_and_b32 v{F}, s55, v{U+1}\nv_lshlrev_b32 v{F+1}, 16, v{U+1}\nv_and_b32 v{F+2}, s55, v{U}\nv_lshlrev_b32 v{F+3}, 16, v{U}")
    for aa in range(2):
        a.wait(lg=tr[aa, 1, 1])
        for c in range(2):
            R = 64 + 16*aa + 8*c; F = 100 + 8*aa + 4*c
            for h in range(2):
                a(f"v_pk_add_f32 v[{R+2*h}:{R+2*h+1}], v[{R+2*h}:{R+2*h+1}], v[{R+4+2*h}:{R+5+2*h}]")
            for h in range(2):
                a(f"v_pk_fma_f32 v[{R+2*h}:{R+2*h+1}], v[{F+2*h}:{F+2*h+1}], s[{50+2*c}:{51+2*c}], v[{R+2*h}:{R+2*h+1}]")
        R = 64 + 16*aa; O = 120 + 4*aa
        for r in range(4):
            a(f"v_cvt_pk_bf16_f32 v{O+r}, v{R+r}, v{R+8+r}")
        a.vmem(f"buffer_store_dwordx4 v[{O}:{O+3}], v15, s[32:35], s{46+aa} offen")
    st.cyc()
    if ST: a("s_waitcnt vmcnt(0)")
    st.flush(177, 3)
    a("L1_end:\ns_endpgm")
    return a
```

```python
import sys
from k01 import *; from k3 import *
NAME = "interleave_layers__ssm_conv_h3__dense_activation_silu__prompt"
def build(NT="", KF="", WF="", PF=True, verbose=False, ST=False, **kw):
    ref = open("cdna_kernels/" + NAME + ".s.ref").read().split("\n")
    hdr = [l for l in ref if l.startswith(";") and "@launch" not in l and "Override" not in l and "Harness parses" not in l]
    s = "\n".join(hdr) + "\n"
    s += "; @launch kernel=prep_kernel grid=(256,1,1) block=(256,1,1) lds=33792\n"
    s += f"; @launch kernel=main_kernel grid=(256,1,1) block=(256,1,1) lds={K2_LDS}\n"
    s += '.amdgcn_target "amdgcn-amd-amdhsa--gfx950"\n'
    for name, a, vg, ac in (("prep_kernel", gen_k0(NT, ST, True, KF, WF, ("main_kernel", "L3_codeend") if PF else None), 96, 96), ("main_kernel", gen_rest(ST, **kw), 512, 256)):
        a.L, n = fix_hazards(a.L, verbose)
        print(name, "instrs", len(a.L), "nops added", n, file=sys.stderr)
        s += head(name) + a.text() + kd(name, vg, ac)
    return s
if __name__ == "__main__":
    out = sys.argv[1] if len(sys.argv) > 1 else "cdna_kernels/" + NAME + ".s"
    kw = eval("dict(" + (sys.argv[2] if len(sys.argv) > 2 else "") + ")")
    txt = build(**kw)
    open(out, "w").write(txt)
```

```python
from asmlib import *
KVT  = 0x0000000
W1R  = 0x0200000
W2R  = 0x0400000
YB   = 0x0600000
XN   = 0x0800000
FL   = 0x0A00000
PART = 0x1000000
WS_SIZE = 0x2000000

STAMP = 0x0B00000
class Stamps:
    def __init__(self, a, on, kidx, base=84, static=False):
        self.static, self.nc = static, 2
        self.a, self.on, self.k, self.base, self.n = a, on, kidx, base, 0
    def real(self):
        if self.on: self.a(f"s_memrealtime s[{self.base}:{self.base+1}]\ns_waitcnt lgkmcnt(0)\nv_writelane_b32 v{self.reg}, s{self.base}, {self.n}"); self.n += 1; self.a.lg = []
    def cyc(self):
        if not self.on: return
        if self.static:
            self.a(f"s_memtime s[{self.base}:{self.base+1}]\ns_memrealtime s[100:101]\ns_waitcnt lgkmcnt(0)\nv_writelane_b32 v{self.reg}, s{self.base}, {self.nc}\nv_writelane_b32 v{self.reg}, s100, {self.nc+30}"); self.nc += 1
        else:
            self.a(f"s_memtime s[{self.base}:{self.base+1}]\ns_mov_b32 m0, s{self.base+2}\ns_waitcnt lgkmcnt(0)\nv_writelane_b32 v{self.reg}, s{self.base}, m0\ns_add_u32 s{self.base+2}, s{self.base+2}, 1")
        self.a.lg = []
    def init(self, reg):
        self.reg = reg
        if self.on: self.a(f"s_mov_b32 s{self.base+2}, 2\nv_mov_b32 v{reg}, 0"); self.real(); self.cyc()
    def flush(self, tmp, wave):
        if not self.on: return
        self.cyc(); self.real()
        self.a(f"""v_mbcnt_lo_u32_b32 v{tmp}, -1, 0
v_mbcnt_hi_u32_b32 v{tmp}, -1, v{tmp}
v_lshlrev_b32 v{tmp}, 2, v{tmp}
s_lshl_b32 s{self.base}, s2, 2
s_add_u32 s{self.base}, s{self.base}, s{wave}
s_lshl_b32 s{self.base}, s{self.base}, 8
s_add_u32 s{self.base}, s{self.base}, {STAMP + self.k*0x40000}
buffer_store_dword v{self.reg}, v{tmp}, s[32:35], s{self.base} offen""")

def srd(a, d, b, size):
    a(f"s_mov_b32 s{d}, s{b}\ns_mov_b32 s{d+1}, s{b+1}\ns_mov_b32 s{d+2}, {size:#x}\ns_mov_b32 s{d+3}, 0x20000")

def kd(name, vgpr, accum, sgpr=102):
    return f""".section .rodata,"a"
.p2align 6
.amdhsa_kernel {name}
  .amdhsa_next_free_vgpr {vgpr}
  .amdhsa_next_free_sgpr {sgpr}
  .amdhsa_accum_offset {accum}
  .amdhsa_group_segment_fixed_size 0
  .amdhsa_kernarg_size 96
  .amdhsa_user_sgpr_count 2
  .amdhsa_user_sgpr_kernarg_segment_ptr 1
  .amdhsa_system_sgpr_workgroup_id_x 1
  .amdhsa_float_denorm_mode_32 3
.end_amdhsa_kernel
.text
"""
def head(name):
    return f".text\n.globl {name}\n.p2align 8\n.type {name},@function\n{name}:\n"

def gen_k0(NT="", ST=False, SENT=False, KF="", WF="", PF=None):
    a = Asm(); st = Stamps(a, ST, 0, static=True)
    a("s_cmp_ge_u32 s2, 256\ns_cbranch_scc1 L0_exit")
    st.init(90)
    a("""
s_load_dwordx4 s[4:7], s[0:1], 8
s_load_dwordx2 s[8:9], s[0:1], 24
s_load_dwordx4 s[12:15], s[0:1], 56
s_load_dwordx2 s[10:11], s[0:1], 88
v_lshrrev_b32 v2, 6, v0
v_and_b32 v1, 63, v0
v_readfirstlane_b32 s3, v2
s_and_b32 s36, s2, 7
s_lshr_b32 s37, s2, 3
""")
    a("""
v_lshrrev_b32 v3, 3, v1
s_lshl_b32 s38, s37, 3
s_add_u32 s38, s38, s3
s_lshl_b32 s38, s38, 13
s_lshl_b32 s39, s36, 7
s_add_u32 s38, s38, s39
v_lshl_add_u32 v3, v3, 10, s38
v_bfe_u32 v4, v1, 4, 1
v_lshlrev_b32 v4, 1, v4
s_add_u32 s39, s3, 1
s_and_b32 s39, s39, 1
s_lshl_b32 s39, s39, 2
v_and_b32 v5, 7, v1
v_xor_b32 v4, v4, v5
v_xor_b32 v4, s39, v4
v_lshl_add_u32 v3, v4, 4, v3
v_subrev_u32 v6, 0x4000, v3
s_mov_b32 s40, 0x8000
s_lshl_b32 s41, s3, 10
s_waitcnt lgkmcnt(0)
""")
    srd(a, 16, 4, 0x200000); srd(a, 20, 6, 0x200000)
    a("s_add_u32 m0, s41, 1024")
    a.vmem(f"buffer_load_dwordx4 v3, s[16:19], 0 offen {NT} lds")
    a("s_add_u32 m0, s41, 9216")
    a.vmem(f"buffer_load_dwordx4 v3, s[20:23], 0 offen {NT} lds")
    a("s_add_u32 m0, s41, 5120")
    a.vmem(f"buffer_load_dwordx4 v3, s[16:19], s40 offen {NT} lds")
    a("s_add_u32 m0, s41, 13312")
    a.vmem(f"buffer_load_dwordx4 v3, s[20:23], s40 offen {NT} lds")
    a("""
s_cmp_lg_u32 s3, 1
s_cbranch_scc1 L0_nohalo
s_mov_b32 m0, 0
s_nop 0
buffer_load_dwordx4 v6, s[16:19], 0 offen lds
L0_nohalo:
""")
    srd(a, 24, 8, 4096); srd(a, 32, 10, WS_SIZE)
    a("""
v_and_b32 v7, 15, v1
s_lshl_b32 s38, s36, 6
s_lshl_b32 s39, s3, 4
s_add_u32 s38, s38, s39
v_add_u32 v8, s38, v7
v_lshlrev_b32 v9, 3, v8
""")
    tsh = a.vmem("buffer_load_dwordx2 v[10:11], v9, s[24:27], 0 offen")
    a("""
s_lshl_b32 s42, s2, 2
s_add_u32 s42, s42, s3
s_movk_i32 s44, 3584
s_cmp_ge_u32 s42, 448
s_cselect_b32 s43, 1, 0
s_cselect_b32 s28, s14, s12
s_cselect_b32 s29, s15, s13
s_cselect_b32 s44, 1024, s44
s_mov_b32 s31, 0x20000
s_cmp_ge_u32 s42, 896
s_cselect_b32 s30, 0, 0x1c0000
s_and_b32 s45, s42, 15
s_lshr_b32 s46, s42, 4
s_sub_u32 s47, s42, 448
s_lshr_b32 s48, s47, 3
s_and_b32 s49, s47, 7
s_cmp_eq_u32 s43, 1
s_cselect_b32 s50, s48, s45
s_cselect_b32 s51, s49, s46
s_lshl_b32 s50, s50, 5
s_mul_i32 s50, s50, s44
s_lshl_b32 s51, s51, 7
s_add_u32 s50, s50, s51
s_lshl_b32 s51, s44, 3
v_lshrrev_b32 v12, 3, v1
v_mul_lo_u32 v12, v12, s44
v_lshl_add_u32 v12, v5, 4, v12
s_lshl_b32 s52, s3, 12
s_add_u32 s52, s52, 17408
""")
    for i in range(4):
        a(f"s_add_u32 m0, s52, {i*1024}")
        tw = a.vmem(f"buffer_load_dwordx4 v12, s[28:31], s50 offen {NT} lds")
        if i < 3: a("s_add_u32 s50, s50, s51")
    if SENT:
        a(f"""
v_mov_b32 v28, -1
v_mov_b32 v29, -1
v_mov_b32 v30, -1
v_mov_b32 v31, -1
v_lshlrev_b32 v25, 4, v0
s_lshl_b32 s56, s2, 13
s_add_u32 s56, s56, {YB}
s_add_u32 s57, s56, 4096
""")
        a.vmem("buffer_store_dwordx4 v[28:31], v25, s[32:35], s56 offen sc1")
        a.vmem("buffer_store_dwordx4 v[28:31], v25, s[32:35], s57 offen sc1")
    if PF:
        a(f"""
s_getpc_b64 s[58:59]
L0_pc:
s_add_u32 s58, s58, {PF[0]}-L0_pc
s_addc_u32 s59, s59, 0
v_lshlrev_b32 v26, 7, v0
v_min_u32 v26, {PF[1]}-{PF[0]}-4, v26
""")
        a.vmem("global_load_dword v26, v26, s[58:59]")
    a("""
v_lshrrev_b32 v13, 4, v1
v_bfe_u32 v14, v1, 2, 2
v_lshl_add_u32 v15, v13, 3, v14
v_add_u32 v15, 8, v15
v_lshlrev_b32 v15, 7, v15
v_bfe_u32 v16, v1, 1, 1
s_lshl_b32 s38, s3, 1
v_add_u32 v16, s38, v16
v_bfe_u32 v17, v1, 3, 1
v_lshlrev_b32 v17, 1, v17
v_xor_b32 v16, v16, v17
v_add_u32 v17, 1, v13
v_and_b32 v17, 1, v17
v_lshlrev_b32 v17, 2, v17
v_xor_b32 v16, v16, v17
v_lshl_add_u32 v15, v16, 4, v15
v_and_b32 v17, 1, v1
v_lshl_add_u32 v15, v17, 3, v15
v_xor_b32 v16, 64, v15
v_subrev_u32 v16, 512, v16
""")
    a(f"""
v_lshrrev_b32 v18, 1, v8
v_lshlrev_b32 v18, 13, v18
v_lshl_add_u32 v18, v17, 6, v18
v_sub_u32 v19, 3, v13
v_lshl_add_u32 v18, v19, 4, v18
s_lshl_b32 s38, s37, 8
s_sub_u32 s53, {KVT + 62*128}, s38
s_mov_b32 s54, 0xffff
s_mov_b32 s55, 0xffff0000
""")
    a.wait(vm=tsh)
    a("""
v_alignbit_b32 v20, v10, v10, 16
v_alignbit_b32 v21, v11, v11, 16
v_and_b32 v22, s54, v10
v_bfi_b32 v23, s54, v11, v10
v_and_b32 v24, s55, v11
s_barrier
""")
    st.cyc()
    toks = []
    for u in range(2):
        K = 32 + 16*u; V = K + 6
        toks.append([a.lds(f"ds_read_b64_tr_b16 v[{K}:{K+1}], v16 offset:{u*4096}"),
                     a.lds(f"ds_read_b64_tr_b16 v[{K+2}:{K+3}], v15 offset:{u*4096}"),
                     a.lds(f"ds_read_b64_tr_b16 v[{K+4}:{K+5}], v15 offset:{u*4096+512}"),
                     a.lds(f"ds_read_b64_tr_b16 v[{V}:{V+1}], v15 offset:{u*4096+8192}"),
                     a.lds(f"ds_read_b64_tr_b16 v[{V+2}:{V+3}], v15 offset:{u*4096+8192+512}")])
    for u in range(2):
        K = 32 + 16*u; V = K + 6; E = 64; P = 72; O = 80 + 4*u
        a.wait(lg=toks[u][2])
        for i in range(4):
            a(f"v_dot2_f32_bf16 v{E+2*i}, v{K+i+2}, v22, 0")
            a(f"v_dot2_f32_bf16 v{E+2*i+1}, v{K+i+2}, v20, 0")
        for i in range(4):
            a(f"v_dot2_f32_bf16 v{E+2*i}, v{K+i+1}, v23, v{E+2*i}")
            a(f"v_dot2_f32_bf16 v{E+2*i+1}, v{K+i+1}, v21, v{E+2*i+1}")
        for i in range(4):
            a(f"v_dot2_f32_bf16 v{E+2*i}, v{K+i}, v24, v{E+2*i}")
        a.wait(lg=toks[u][4])
        for i in range(4):
            a(f"v_lshlrev_b32 v{P+2*i}, 16, v{V+i}")
            a(f"v_and_b32 v{P+2*i+1}, s55, v{V+i}")
        for i in range(4):
            a(f"v_pk_mul_f32 v[{E+2*i}:{E+2*i+1}], v[{E+2*i}:{E+2*i+1}], v[{P+2*i}:{P+2*i+1}]")
        for i in range(4):
            a(f"v_cvt_pk_bf16_f32 v{O+3-i}, v{E+2*i+1}, v{E+2*i}")
        a.vmem(f"buffer_store_dwordx4 v[{O}:{O+3}], v18, s[32:35], s53 offen offset:{128*(1-u)} {KF}")
    st.cyc()
    a(f"""
s_cmp_ge_u32 s42, 896
s_cbranch_scc1 L0_now
v_lshlrev_b32 v25, 4, v1
s_waitcnt vmcnt(2)
s_cmp_eq_u32 s43, 1
s_cbranch_scc1 L0_w2
v_lshl_add_u32 v26, v13, 3, v14
v_lshlrev_b32 v26, 7, v26
v_and_b32 v27, 3, v1
v_lshl_add_u32 v26, v27, 3, v26
v_add_u32 v26, s52, v26
s_lshl_b32 s46, s46, 12
s_mul_i32 s45, s45, 114688
s_add_u32 s46, s46, s45
s_add_u32 s46, s46, {W1R}
""")
    for b in range(4):
        for hh in range(2):
            a(f"ds_read_b64_tr_b16 v[{32+4*b+2*hh}:{33+4*b+2*hh}], v26 offset:{32*b+512*hh}")
    for b in range(4):
        a(f"s_waitcnt lgkmcnt({6-2*b})")
        a(f"buffer_store_dwordx4 v[{32+4*b}:{35+4*b}], v25, s[32:35], s46 offen offset:{1024*b} {WF}")
    a(f"""
s_branch L0_end
L0_w2:
v_lshrrev_b32 v26, 5, v1
v_lshl_add_u32 v26, v26, 3, v14
v_lshlrev_b32 v26, 7, v26
v_and_b32 v27, 1, v13
v_lshl_add_u32 v26, v27, 5, v26
v_lshl_add_u32 v26, v17, 4, v26
v_bfe_u32 v27, v1, 1, 1
v_lshl_add_u32 v26, v27, 3, v26
v_add_u32 v26, s52, v26
s_mul_i32 s45, s48, 37
s_lshr_b32 s45, s45, 8
s_mul_i32 s46, s45, 7
s_sub_u32 s46, s48, s46
s_lshl_b32 s45, s45, 4
s_lshl_b32 s49, s49, 1
s_add_u32 s45, s45, s49
s_mul_i32 s45, s45, 14
s_lshl_b32 s46, s46, 1
s_add_u32 s45, s45, s46
s_lshl_b32 s45, s45, 10
s_add_u32 s45, s45, {W2R}
s_add_u32 s46, s45, 14336
""")
    for b in range(4):
        kk, Cb = b >> 1, b & 1
        for hh in range(2):
            a(f"ds_read_b64_tr_b16 v[{32+4*b+2*hh}:{33+4*b+2*hh}], v26 offset:{2048*kk+64*Cb+512*hh}")
    for b in range(4):
        kk, Cb = b >> 1, b & 1
        a(f"s_waitcnt lgkmcnt({6-2*b})")
        a(f"buffer_store_dwordx4 v[{32+4*b}:{35+4*b}], v25, s[32:35], s{45+Cb} offen offset:{1024*kk} {WF}")
    a(f"""
s_branch L0_end
L0_now:
s_cmp_lg_u32 s2, 255
s_cbranch_scc1 L0_end
v_mov_b32 v32, 0
v_mov_b32 v33, 0
v_mov_b32 v34, 0
v_mov_b32 v35, 0
v_lshlrev_b32 v25, 4, v0
s_mov_b32 s45, {FL}
s_mov_b32 s46, {FL+4096}
buffer_store_dwordx4 v[32:35], v25, s[32:35], s45 offen sc1
buffer_store_dwordx4 v[32:35], v25, s[32:35], s46 offen sc1
L0_end:
""")
    if ST: a("s_waitcnt vmcnt(0)")
    st.flush(91, 3)
    a("L0_exit:\ns_endpgm")
    return a

HC_STR = 4160
UR = 8*HC_STR
UR_STR = 4608
RED = UR + 2*UR_STR
K1_LDS = RED + 32768
def gen_k1(YG=False, NT="", ST=False):
    a = Asm(); st = Stamps(a, ST, 1)
    a("s_cmp_ge_u32 s2, 256\ns_cbranch_scc1 L1_end")
    st.init(176)
    a("""
s_load_dwordx4 s[4:7], s[0:1], 32
s_load_dwordx2 s[10:11], s[0:1], 88
v_lshrrev_b32 v2, 6, v0
v_and_b32 v1, 63, v0
v_readfirstlane_b32 s3, v2
s_and_b32 s36, s2, 7
s_lshr_b32 s37, s2, 3
s_lshl_b32 s38, s36, 5
s_add_u32 s38, s38, s37
s_lshl_b32 s39, s38, 13
s_add_u32 s40, s39, 4096
v_lshlrev_b32 v3, 4, v0
v_subrev_u32 v4, 8, v3
v_cmp_eq_u32 vcc, 0, v0
v_mov_b32 v5, 0x40000000
v_lshrrev_b32 v6, 2, v0
v_cndmask_b32 v4, v4, v5, vcc
v_lshlrev_b32 v6, 7, v6
v_and_b32 v7, 3, v0
v_lshl_add_u32 v6, v7, 4, v6
s_lshl_b32 s41, s3, 10
s_lshl_b32 s44, s38, 2
s_waitcnt lgkmcnt(0)
""")
    srd(a, 16, 4, 0x200000); srd(a, 32, 10, WS_SIZE)
    a("s_load_dword s45, s[6:7], s44")
    th = []
    for c in range(2):
        H = 16 + 8*c
        a.vmem(f"buffer_load_dwordx4 v[{H+2}:{H+5}], v3, s[16:19], s{39+c} offen {NT}")
        th.append(a.vmem(f"buffer_load_dwordx2 v[{H}:{H+1}], v4, s[16:19], s{39+c} offen {NT}"))
    a(f"s_add_u32 s42, s39, {KVT}\ns_add_u32 s43, s42, 64")
    for c in range(2):
        a(f"s_add_u32 m0, s41, {UR + c*UR_STR}")
        tu = a.vmem(f"buffer_load_dwordx4 v6, s[32:35], s{42+c} offen lds")
    a(f"""
v_mov_b32 v8, 0
v_mov_b32 v9, 0
v_mov_b32 v10, 0
v_mov_b32 v11, 0
v_lshrrev_b32 v12, 5, v1
v_mul_u32_u24 v12, {UR_STR}, v12
v_and_b32 v13, 31, v1
v_lshl_add_u32 v12, v13, 4, v12
v_add_u32 v12, {UR+4096}, v12
v_bfe_u32 v13, v1, 1, 3
v_mul_u32_u24 v13, {HC_STR}, v13
v_and_b32 v14, 1, v1
v_lshl_add_u32 v13, v14, 4, v13
v_add_u32 v13, 32, v13
v_cmp_gt_u32 vcc, 64, v0
s_nop 1
v_cndmask_b32 v12, v13, v12, vcc
""")
    a.lds("ds_write_b128 v12, v[8:11]")
    a(f"""
v_and_b32 v8, 15, v1
v_lshrrev_b32 v9, 4, v1
v_sub_u32 v10, 15, v8
v_and_b32 v11, 3, v10
v_mul_u32_u24 v12, {HC_STR}, v11
v_lshrrev_b32 v10, 2, v10
v_lshlrev_b32 v10, 3, v10
v_sub_u32 v12, v12, v10
v_lshl_add_u32 v12, v9, 4, v12
s_lshr_b32 s46, s3, 1
s_and_b32 s47, s3, 1
s_lshl_b32 s47, s47, 8
s_mul_i32 s48, s46, {4*HC_STR}
s_add_u32 s48, s48, s47
s_add_u32 s48, s48, 64
v_add_u32 v12, s48, v12
s_mul_i32 s48, s46, {UR_STR}
s_add_u32 s48, s48, s47
s_add_u32 s48, s48, {UR + 4064 - 3584}
v_lshlrev_b32 v13, 5, v8
v_sub_u32 v13, s48, v13
v_lshl_add_u32 v13, v9, 4, v13
""")
    st.cyc()
    for c in range(2):
        H = 16 + 8*c
        a.wait(vm=th[c])
        base = c*4*HC_STR + 64
        a.lds(f"ds_write_b128 v3, v[{H+2}:{H+5}] offset:{base}")
        for i in range(4): a(f"v_alignbit_b32 v{32+i}, v{H+2+i}, v{H+1+i}, 16")
        a.lds(f"ds_write_b128 v3, v[32:35] offset:{base+HC_STR}")
        for i in range(4): a(f"v_mov_b32 v{36+i}, v{H+1+i}")
        a.lds(f"ds_write_b128 v3, v[36:39] offset:{base+2*HC_STR}")
        for i in range(4): a(f"v_alignbit_b32 v{40+i}, v{H+1+i}, v{H+i}, 16")
        a.lds(f"ds_write_b128 v3, v[40:43] offset:{base+3*HC_STR}")
        if c == 0: a.wait(lg='all')
    a.wait(vm='all', lg='all')
    a("s_barrier")
    st.cyc()
    ACC = 16; AF = [48, 112]; BF = [80, 144]
    def reads(e):
        p = e & 1; L = []
        for k in range(8):
            L.append(f"ds_read_b64 v[{AF[p]+4*k}:{AF[p]+4*k+1}], v12 offset:{512*k+64*e}")
            L.append(f"ds_read_b64 v[{AF[p]+4*k+2}:{AF[p]+4*k+3}], v12 offset:{512*k+64*e+8}")
            L.append(f"ds_read_b128 v[{BF[p]+4*k}:{BF[p]+4*k+3}], v13 offset:{512*(7-k)+64*e}")
        return L
    order = []
    for k in range(8):
        order.append([(g, k) for g in range(k) if g+k <= 7] + [(k, b) for b in range(k+1) if k+b <= 7])
    r0 = reads(0); tk = []
    for s in r0[:15]: tk.append(a.lds(s))
    pend = r0[15:]
    seen = set()
    for e in range(4):
        p = e & 1
        nxt = reads(e+1) if e < 3 else []
        if e > 0: a.wait(lg='all')
        for k in range(8):
            if e == 0: a.wait(lg=tk[3*k+2])
            for (g, b) in order[k]:
                t = g+b
                c = f"v[{ACC+4*t}:{ACC+4*t+3}]"
                a(f"v_mfma_f32_16x16x32_bf16 {c}, v[{AF[p]+4*g}:{AF[p]+4*g+3}], v[{BF[p]+4*b}:{BF[p]+4*b+3}], {c if t in seen else 0}")
                seen.add(t)
                if pend: tk.append(a.lds(pend.pop(0)))
                elif nxt: a.lds(nxt.pop(0))
        assert not nxt and not pend
    st.cyc()
    a(f"""
v_and_b32 v10, 1, v9
v_lshlrev_b32 v10, 1, v10
v_xor_b32 v10, v10, v8
v_lshlrev_b32 v10, 4, v10
v_lshl_add_u32 v10, v9, 8, v10
s_lshl_b32 s48, s3, 13
s_add_u32 s48, s48, {RED}
v_add_u32 v10, s48, v10
v_and_b32 v4, 1, v1
v_bfe_u32 v5, v1, 1, 4
v_lshrrev_b32 v6, 5, v1
v_lshl_add_u32 v7, v6, 1, v4
v_lshlrev_b32 v11, 1, v4
v_xor_b32 v11, v11, v5
v_lshlrev_b32 v11, 4, v11
v_lshl_add_u32 v11, v7, 8, v11
s_lshl_b32 s48, s3, 11
s_add_u32 s48, s48, {RED}
v_add_u32 v11, s48, v11
""")
    for t in range(8):
        a.lds(f"ds_write_b128 v10, v[{ACC+4*t}:{ACC+4*t+3}] offset:{1024*t}")
    a(f"""
v_lshlrev_b32 v14, 5, v5
v_lshl_add_u32 v14, v7, 3, v14
s_lshl_b32 s48, s3, 10
s_sub_u32 s48, {UR + 4088 - 512}, s48
v_sub_u32 v14, s48, v14
""")
    tu = {}
    for aa in range(2):
        for c in range(2):
            tu[aa, c] = a.lds(f"ds_read_b64 v[{48+4*aa+2*c}:{49+4*aa+2*c}], v14 offset:{c*UR_STR + 512*(1-aa)}")
    a(f"""
s_and_b32 s46, s38, 3
s_lshl_b32 s46, s46, 4
s_lshr_b32 s47, s38, 2
s_and_b32 s47, s47, 15
s_add_u32 s46, s46, s47
s_and_b32 s47, s38, 192
s_add_u32 s46, s46, s47
s_lshl_b32 s46, s46, {7 if YG else 5}
s_lshl_b32 s47, s3, 19
s_add_u32 s46, s46, s47
s_add_u32 s46, s46, {YB}
s_add_u32 s47, s46, {32*8192}
v_lshl_add_u32 v15, v5, 1, v6
""")
    if YG:
        a("v_and_b32 v12, 3, v15\nv_lshrrev_b32 v15, 2, v15\nv_lshlrev_b32 v15, 15, v15\nv_lshl_add_u32 v15, v12, 5, v15")
    else:
        a("v_lshlrev_b32 v15, 13, v15")
    a(f"""
v_lshl_add_u32 v15, v4, 4, v15
s_lshl_b32 s50, s45, 16
s_and_b32 s52, s45, 0xffff0000
s_mov_b32 s51, s50
s_mov_b32 s53, s52
s_mov_b32 s55, 0xffff0000
""")
    a.wait(lg='all')
    a("s_barrier")
    tr = {}
    for aa in range(2):
        for c in range(2):
            for eh in range(2):
                R = 64 + 16*aa + 8*c + 4*eh
                tr[aa, c, eh] = a.lds(f"ds_read_b128 v[{R}:{R+3}], v11 offset:{(2*c+eh)*8192 + aa*1024}")
    for aa in range(2):
        for c in range(2):
            U = 48+4*aa+2*c; F = 100 + 8*aa + 4*c
            a(f"v_and_b32 v{F}, s55, v{U+1}\nv_lshlrev_b32 v{F+1}, 16, v{U+1}\nv_and_b32 v{F+2}, s55, v{U}\nv_lshlrev_b32 v{F+3}, 16, v{U}")
    for aa in range(2):
        a.wait(lg=tr[aa, 1, 1])
        for c in range(2):
            R = 64 + 16*aa + 8*c; F = 100 + 8*aa + 4*c
            for h in range(2):
                a(f"v_pk_add_f32 v[{R+2*h}:{R+2*h+1}], v[{R+2*h}:{R+2*h+1}], v[{R+4+2*h}:{R+5+2*h}]")
            for h in range(2):
                a(f"v_pk_fma_f32 v[{R+2*h}:{R+2*h+1}], v[{F+2*h}:{F+2*h+1}], s[{50+2*c}:{51+2*c}], v[{R+2*h}:{R+2*h+1}]")
        R = 64 + 16*aa; O = 120 + 4*aa
        for r in range(4):
            a(f"v_cvt_pk_bf16_f32 v{O+r}, v{R+r}, v{R+8+r}")
        a.vmem(f"buffer_store_dwordx4 v[{O}:{O+3}], v15, s[32:35], s{46+aa} offen")
    st.cyc()
    if ST: a("s_waitcnt vmcnt(0)")
    st.flush(177, 3)
    a("L1_end:\ns_endpgm")
    return a
```
